```python
import torch

def _softmax(x, axis=-1):
    return torch.softmax(x, dim=axis)

def _gelu(x):
    return torch.nn.functional.gelu(x, approximate='tanh')

def _silu(x):
    return torch.nn.functional.silu(x)

def _sigmoid(x):
    return torch.sigmoid(x)

def _layernorm(x, axis=-1, eps=1e-05):
    m = x.mean(dim=axis, keepdim=True)
    v = x.var(dim=axis, keepdim=True, unbiased=False)
    return (x - m) / torch.sqrt(v + eps)

def _scatter_add(tgt, idx, src, axis=0):
    return tgt.clone().index_add_(axis, idx, src)

def _segment_sum(src, seg, n):
    out = torch.zeros((n,) + src.shape[1:], dtype=src.dtype)
    return out.index_add_(0, seg, src)

def _pad(x, pw):
    flat = tuple((v for pair in reversed(pw) for v in pair))
    return torch.nn.functional.pad(x, flat)
kernel_name = 'adaLN_cond__spectral_gfnet__dense_activation_mish__prompt'

def setup_inputs():

    _w = lambda a: (lambda t: t.to(torch.bfloat16) if t.is_floating_point() else t)(torch.as_tensor(a))

    def _A_setup():
        B, S, D = (1, 2048, 512)
        Df = D // 2 + 1
        return {'x': _w((lambda *s: torch.randn(*s, dtype=torch.bfloat16) * 0.05)(B, S, D)), 'w_r': _w((lambda *s: torch.randn(*s, dtype=torch.bfloat16) * 1.6)(S, Df) * 0.02), 'w_i': _w((lambda *s: torch.randn(*s, dtype=torch.bfloat16) * 1.6)(S, Df) * 0.02)}
    _A_in = _A_setup()

    def _B_setup():
        B, S, D, F = (1, 2048, 512, 1376)
        return {'x': _w((lambda *s: torch.randn(*s, dtype=torch.bfloat16) * 0.05)(B, S, D)), 'w1': _w((lambda *s: torch.randn(*s, dtype=torch.bfloat16) * 0.8)(D, F) * D ** (-0.5)), 'b1': _w((lambda *s: torch.randn(*s, dtype=torch.bfloat16) * 0.4)(F)), 'w2': _w((lambda *s: torch.randn(*s, dtype=torch.bfloat16) * 0.2)(F, D) * F ** (-0.5))}
    _B_in = _B_setup()
    return {'A_x': _A_in['x'], 'A_w_r': _A_in['w_r'], 'A_w_i': _A_in['w_i'], 'B_x': _B_in['x'], 'B_w1': _B_in['w1'], 'B_b1': _B_in['b1'], 'B_w2': _B_in['w2'], 'c': _w((lambda *s: torch.randn(*s, dtype=torch.bfloat16) * 0.2)(1, 512) * 8.0), 'w_mod': _w((lambda *s: torch.randn(*s, dtype=torch.bfloat16) * 0.2)(512, 6 * 512) * 512 ** (-0.5) * 8.0)}

def reference(A_x, A_w_r, A_w_i, B_x, B_w1, B_b1, B_w2, c, w_mod):

    def _A_ref(x, w_r, w_i):
        B, S, D = x.shape
        X = (lambda x, axes=(-2, -1): torch.fft.rfft2(x.float(), dim=axes))(x, axes=(-2, -1))
        W = w_r + 1j * w_i
        X = X * W
        y = (lambda x, s, axes=(-2, -1): torch.fft.irfft2(x, s=s, dim=axes).to(torch.bfloat16))(X, (S, D), axes=(-2, -1))
        return y

    def _B_ref(x, w1, b1, w2):
        h = torch.einsum('bsd,df->bsf', x, w1) + b1
        sp = torch.log1p(torch.exp(-torch.abs(h))) + torch.where(h > 0, h, torch.zeros_like(h))
        act = h * torch.tanh(sp)
        return torch.einsum('bsf,fd->bsd', act, w2)
    x = A_x
    mod = (_silu(c) @ w_mod).reshape(c.shape[0], 6, 1, -1)
    sa, ca, ga, sb, cb, gb = (mod[:, 0].clone(), mod[:, 1].clone(), mod[:, 2].clone(), mod[:, 3].clone(), mod[:, 4].clone(), mod[:, 5].clone())
    h = _layernorm(x, axis=-1) * (1 + ca) + sa
    x = x + ga * _A_ref(h, A_w_r, A_w_i)
    h = _layernorm(x, axis=-1) * (1 + cb) + sb
    x = x + gb * _B_ref(h, B_w1, B_b1, B_w2)
    return x
```

```python
import re

TRANS = ("v_exp_f32", "v_log_f32", "v_rcp_f32", "v_rsq_f32", "v_sqrt_f32", "v_sin_f32", "v_cos_f32")
_REG = re.compile(r"^(-|\|)?([vas])(\d+)$")
_RNG = re.compile(r"^(-)?([vas])\[(\d+):(\d+)\]$")


def regs_of(tok):
    tok = tok.strip()
    m = _REG.match(tok)
    if m:
        return [(m.group(2), int(m.group(3)))]
    m = _RNG.match(tok)
    if m:
        return [(m.group(2), i) for i in range(int(m.group(3)), int(m.group(4)) + 1)]
    if tok == "vcc":
        return [("s", 106), ("s", 107)]
    if tok == "vcc_lo":
        return [("s", 106)]
    if tok == "vcc_hi":
        return [("s", 107)]
    if tok == "m0":
        return [("s", 124)]
    if tok == "exec":
        return [("s", 126), ("s", 127)]
    if tok == "exec_lo":
        return [("s", 126)]
    if tok == "exec_hi":
        return [("s", 127)]
    return []


class Ins:
    __slots__ = ("text", "op", "dst", "src", "kind", "tag", "srcC", "srcAB", "passes", "wide", "meta")

    def __init__(self, text, tag=None):
        self.text = text
        self.tag = tag
        self.meta = None
        parts = text.split(None, 1)
        op = self.op = parts[0]
        rest = parts[1] if len(parts) > 1 else ""
        toks = [t.strip() for t in rest.split(",")] if rest else []
        mods = ""
        if toks:
            last = toks[-1].split(None, 1)
            m = re.match(r"^(.*?)(\s+(?:op_sel|neg_lo|neg_hi|offset|offen|row_|quad_perm|sc0|sc1|nt|lds|glc|bank_mask|bound_ctrl|clamp|mul:|div:).*)?$", rest)
            ops_s, mods = m.group(1), (m.group(2) or "")
            toks = [t.strip() for t in ops_s.split(",")]
        R = [regs_of(t) for t in toks]
        self.dst, self.src, self.srcC, self.srcAB = [], [], [], []
        self.passes = 0
        self.wide = False
        allr = lambda idx: [r for i in idx for r in R[i]]
        n = len(R)
        if op.startswith("v_mfma"):
            self.kind = "mfma"
            self.dst = R[0]
            self.srcAB = R[1] + R[2]
            self.srcC = R[3]
            self.src = self.srcAB + self.srcC
            self.passes = 8 if "32x32" in op else 4
        elif op.startswith("v_permlane"):
            self.kind = "permlane"
            self.dst = R[0] + R[1]
            self.src = R[0] + R[1]
        elif op.startswith("v_readlane") or op.startswith("v_readfirstlane"):
            self.kind = "readlane"
            self.dst = R[0]
            self.src = allr(range(1, n))
        elif op.startswith("v_"):
            self.kind = "trans" if op.replace("_e32", "").replace("_e64", "") in TRANS else "valu"
            if "_dpp" in op:
                self.kind = "dpp"
            self.dst = list(R[0])
            self.src = allr(range(1, n))
            if op.startswith(("v_fmac", "v_pk_fmac")) or "_dpp" in op:
                self.src = self.src + R[0]
            if "_co_" in op:
                self.dst += R[1]
                self.src = allr(range(2, n))
        elif op.startswith("ds_read") or op.startswith("ds_bpermute"):
            self.kind = "ds"
            self.dst = R[0]
            self.src = allr(range(1, n))
        elif op.startswith("ds_write"):
            self.kind = "ds"
            self.src = allr(range(n))
        elif op.startswith(("global_load", "buffer_load")):
            self.kind = "vmem"
            if " lds" in mods:
                self.src = allr(range(n)) + [("s", 124)]
                self.meta = "dma"
            else:
                self.dst = R[0]
                self.src = allr(range(1, n))
                if "d16" in op:
                    self.meta = "d16"
        elif op.startswith(("global_store", "buffer_store")):
            self.kind = "vmem"
            self.src = allr(range(n))
            self.wide = "x4" in op or "x3" in op
            self.meta = R[1] if op.startswith("global") else R[0]
        elif op.startswith(("s_load", "s_memrealtime", "s_memtime")):
            self.kind = "smem"
            self.dst = R[0]
            self.src = allr(range(1, n))
        elif op in ("s_waitcnt", "s_nop", "s_barrier", "s_endpgm", "s_branch", "s_sleep", "s_setprio") or op.startswith("s_cbranch"):
            self.kind = "ctl"
        elif op.startswith("s_cmp") or op.startswith("s_bitcmp"):
            self.kind = "salu"
            self.src = allr(range(n))
        elif op.startswith("s_"):
            self.kind = "salu"
            self.dst = R[0]
            self.src = allr(range(1, n))
        else:
            raise ValueError("unknown instruction: " + text)


class Asm:
    def __init__(self):
        self.items = []

    def __call__(self, text, tag=None):
        self.items.append(Ins(text, tag))

    def label(self, name):
        self.items.append(("label", name))

    def raw(self, text):
        self.items.append(("raw", text))

    def comment(self, text):
        self.items.append(("raw", "; " + text))

    def wait_tag(self, *tags):
        self.items.append(("wait", tags))

    def drain(self, vm=True, lgkm=True):
        self.items.append(("drain", vm, lgkm))

    def cond_begin(self):
        self.items.append(("cond", 1))

    def cond_end(self):
        self.items.append(("cond", 0))

    def extend(self, other):
        self.items.extend(other.items)

    def count(self):
        return sum(1 for i in self.items if isinstance(i, Ins))


def interleave(main, fill, every=1, per=1, start=0):
    out = Asm()
    f = list(fill.items)
    k = 0
    for it in main.items:
        out.items.append(it)
        if isinstance(it, Ins) and it.kind == "mfma":
            k += 1
            if k > start and (k - start) % every == 0:
                took = 0
                while f and took < per:
                    x = f.pop(0)
                    out.items.append(x)
                    if isinstance(x, Ins):
                        took += 2 if x.kind == "trans" else 1
    out.items.extend(f)
    return out


VALU_KINDS = ("valu", "trans", "dpp", "permlane", "readlane")


def finalize(asm):
    out = []
    vm, lg = [], []
    hist = []
    pos = 0
    cond_stack, cond_n, cond_saved = [], 0, []
    stats = {"nops": 0, "waits": 0, "ins": 0}

    def younger(lst, idx):
        act = set(cond_stack)
        return sum(1 for o in lst[idx + 1:] if o["cond"] is None or o["cond"] in act)

    def emit_wait(vmn=None, lgn=None):
        nonlocal pos
        parts = []
        if vmn is not None:
            parts.append(f"vmcnt({min(vmn, 63)})")
        if lgn is not None:
            parts.append(f"lgkmcnt({min(lgn, 15)})")
        out.append("s_waitcnt " + " ".join(parts))
        pos += 1
        stats["waits"] += 1

    def need(lst, pred):
        idx = -1
        for i, o in enumerate(lst):
            if pred(o):
                idx = i
        return idx

    def retire(lst, idx):
        if cond_stack:
            for o in lst[:idx + 1]:
                o.setdefault("done_in", set()).add(cond_stack[-1])
            lst[:] = [o for k, o in enumerate(lst) if not (k <= idx and o["cond"] == cond_stack[-1])]
        else:
            del lst[:idx + 1]

    def pending(o):
        return not (o.get("done_in") and (o["done_in"] & set(cond_stack)))

    def do_waits(iv, il):
        vmn = lgn = None
        if iv >= 0:
            vmn = younger(vm, iv)
        if il >= 0:
            if any(o["smem"] for o in lg):
                lgn, il = 0, len(lg) - 1
            else:
                lgn = younger(lg, il)
                if lgn > 15:
                    lgn = 15
        if vmn is not None or lgn is not None:
            emit_wait(vmn, lgn)
            if iv >= 0:
                retire(vm, iv)
            if il >= 0:
                retire(lg, il)

    for it in asm.items:
        if not isinstance(it, Ins):
            k = it[0]
            if k == "label":
                out.append(it[1] + ":")
            elif k == "raw":
                out.append(it[1])
            elif k == "wait":
                tags = set(it[1])
                do_waits(need(vm, lambda o: o["tag"] in tags and pending(o)), need(lg, lambda o: o["tag"] in tags and pending(o)))
            elif k == "drain":
                emit_wait(0 if it[1] else None, 0 if it[2] else None)
                if it[1] and vm:
                    retire(vm, len(vm) - 1)
                if it[2] and lg:
                    retire(lg, len(lg) - 1)
            elif k == "cond":
                if it[1]:
                    cond_n += 1
                    cond_stack.append(cond_n)
                    cond_saved.append((list(hist), pos))
                else:
                    cond_stack.pop()
                    sh, sp = cond_saved.pop()
                    hist = hist + [(p, pos - (sp - q)) for (p, q) in sh]
            continue
        ins = it
        touched = set(ins.src) | set(ins.dst)
        if ins.meta == "d16":
            chk = lambda o: pending(o) and (o["dst"] & touched) and not o["d16"]
        else:
            chk = lambda o: pending(o) and (o["dst"] & touched)
        do_waits(need(vm, chk), need(lg, chk))
        req = 0
        src, dst = set(ins.src), set(ins.dst)
        isv = ins.kind in VALU_KINDS
        for (p, ppos) in hist:
            d = pos - ppos - 1
            pd = set(p.dst)
            w = 0
            if p.kind in VALU_KINDS:
                vw = {r for r in pd if r[0] in "va"}
                sw = {r for r in pd if r[0] == "s"}
                if ins.kind == "mfma" and vw & src:
                    w = max(w, 2)
                if ins.kind in ("permlane", "dpp") and vw & src:
                    w = max(w, 2)
                if ins.kind == "readlane" and vw & src:
                    w = max(w, 1)
                if p.kind == "trans" and isv and vw & src:
                    w = max(w, 1)
                if sw & src:
                    if isv:
                        w = max(w, 4 if ins.kind == "readlane" else 2)
                    if ins.kind == "vmem":
                        w = max(w, 5)
                    if ins.kind in ("salu", "smem"):
                        w = max(w, 1)
            if p.kind == "mfma":
                full = p.passes + 4
                if ins.kind == "mfma":
                    if pd & set(ins.srcAB):
                        w = max(w, full)
                    if pd & set(ins.srcC) and not (p.dst == ins.srcC and p.passes == ins.passes):
                        w = max(w, p.passes + 2)
                    if pd & dst and p.dst != ins.srcC:
                        w = max(w, p.passes + 2)
                elif pd & (src | dst):
                    w = max(w, full)
                if isv and set(p.srcC) & dst:
                    w = max(w, p.passes - 1)
            if p.kind == "vmem" and p.wide and set(p.meta) & dst:
                w = max(w, 2 if isv else 1)
            if p.kind == "salu" and ("s", 124) in pd and ins.meta == "dma":
                w = max(w, 1)
            req = max(req, w - d)
        while req > 0:
            nn = min(req, 16)
            out.append(f"s_nop {nn - 1}")
            pos += nn
            req -= nn
            stats["nops"] += 1
        out.append(ins.text)
        stats["ins"] += 1
        hist.append((ins, pos))
        pos += (int(ins.text.split()[1]) + 1) if ins.op == "s_nop" else 1
        hist = [(p, q) for (p, q) in hist if pos - q < 24]
        cond = cond_stack[-1] if cond_stack else None
        if ins.kind == "vmem":
            vm.append(dict(dst=set(ins.dst), tag=ins.tag, cond=cond, smem=False, d16=ins.meta == "d16"))
        elif ins.kind == "ds":
            lg.append(dict(dst=set(ins.dst), tag=ins.tag, cond=cond, smem=False, d16=False))
        elif ins.kind == "smem":
            lg.append(dict(dst=set(ins.dst), tag=ins.tag, cond=cond, smem=True, d16=False))
    return out, stats


class Pool:
    def __init__(self, kind, lo, hi):
        self.kind, self.free, self.used = kind, set(range(lo, hi)), {}
        self.high = lo
        self.groups = {}

    def alloc(self, name, n=1, align=None, at=None, hi=False):
        align = align or (1 if n == 1 else (2 if n < 4 else 4))
        if at is not None:
            assert all(at + i in self.free for i in range(n)), f"{name}: fixed registers busy"
            base = at
        else:
            base = next((b for b in sorted(self.free, reverse=hi) if b % align == 0 and all(b + i in self.free for i in range(n))), None)
            assert base is not None, f"out of {self.kind} registers for {name}: {self.used}"
        for i in range(n):
            self.free.remove(base + i)
        assert name not in self.used, name
        self.used[name] = (base, n)
        self.high = max(self.high, base + n)
        return Reg(self.kind, base, n)

    def alloc_quads(self, name, n, hi=False):
        assert n % 4 == 0
        self.groups[name] = n // 4
        return RegList([self.alloc(f"{name}#{k}", 4, hi=hi) for k in range(n // 4)])

    def release(self, *names):
        for name in names:
            if name in self.groups:
                self.release(*[f"{name}#{k}" for k in range(self.groups.pop(name))])
                continue
            base, n = self.used.pop(name)
            self.free.update(range(base, base + n))


class Reg:
    def __init__(self, kind, base, n):
        self.kind, self.base, self.n = kind, base, n

    def __getitem__(self, i):
        if isinstance(i, slice):
            a = i.start or 0
            b = self.n if i.stop is None else i.stop
            assert 0 <= a < b <= self.n
            return Reg(self.kind, self.base + a, b - a)
        assert 0 <= i < self.n, (i, self.n)
        return Reg(self.kind, self.base + i, 1)

    def __str__(self):
        if self.n == 1:
            return f"{self.kind}{self.base}"
        return f"{self.kind}[{self.base}:{self.base + self.n - 1}]"

    __format__ = lambda self, spec: str(self)


class RegList:
    def __init__(self, quads):
        self.quads, self.n = quads, 4 * len(quads)

    def __getitem__(self, i):
        if isinstance(i, slice):
            a = i.start or 0
            b = self.n if i.stop is None else i.stop
            assert 0 <= a < b <= self.n
            if a // 4 == (b - 1) // 4:
                return self.quads[a // 4][a % 4:(b - 1) % 4 + 1]
            assert a % 4 == 0 and b % 4 == 0
            return RegList(self.quads[a // 4:b // 4])
        return self.quads[i // 4][i % 4]
```

```python
import math
import struct
import sys

sys.path.insert(0, "tools")
from asmlib import Asm, Pool, Reg, finalize, interleave

KNAME = "adaLN_cond__spectral_gfnet__dense_activation_mish__prompt_kernel"

WS_A, WS_M2, WS_W256 = 0x1000, 0x5000, 0x20000
WS_B, WS_WT, WS_C, WS_D, WS_X1, WS_ACT = 0x200000, 0x400000, 0x600000, 0x800000, 0xA00000, 0xC00000
WS_END = 0x1200000
WS_STAMP = 0x1400000
L_PL, L_ROW, L_MODF, L_P0 = 0, 9216, 18432, 22528
L_X1, L_X2, L_ZREV, L_X1T = 0, 8192, 18432, 18432
L_STE, L_STP, L_M2F = 26624, 66560, 155648
L_H2, L_RED = 0, 0
STE_W, STP_W = 9216, 21504
LDS_BYTES = 163840

LOG2E, LN2 = 1.4426950408889634, 0.6931471805599453


def f32(x):
    return "0x%08x" % struct.unpack("<I", struct.pack("<f", x))[0]


def pr(r, i):
    return r[i:i + 2]


class Gen:
    def __init__(self, stamps=False, opt=None):
        self.A = Asm()
        self.tail = []
        self.V = Pool("v", 1, 256)
        self.S = Pool("s", 28, 100)
        self.stamps = stamps
        self.nstamp = 0
        self.opt = dict(mod2_at="P1", actclr_at="WB")
        self.opt.update(opt or {})

    def v(self, name, n=1, **k):
        if n > 4 and n % 4 == 0 and "at" not in k and "align" not in k:
            return self.V.alloc_quads(name, n, **k)
        return self.V.alloc(name, n, **k)

    def s(self, name, n=1, **k):
        return self.S.alloc(name, n, **k)

    def stamp(self):
        if self.stamps:
            k = self.nstamp
            if k >= 2:
                self.A(f"v_writelane_b32 {self.vStamp}, s{(0, 10, 24)[(k - 2) % 3]}, {k - 2}")
            b = (0, 10, 24)[k % 3]
            self.A(f"s_memrealtime s[{b}:{b + 1}]")
            self.nstamp += 1

    def barrier(self):
        self.A.drain(vm=False, lgkm=True)
        self.A("s_barrier")

    def retry(self, name, again, body=None):
        A = self.A
        A(f"s_cbranch_vccnz L_{name}_retry")
        A.label(f"L_{name}_ok")
        T = Asm()
        T.label(f"L_{name}_retry")
        T(f"s_sub_u32 {self.sBud}, {self.sBud}, 1")
        T(f"s_cbranch_scc1 L_{name}_giveup")
        if body is not None:
            T.extend(body)
            T.drain()
        T(f"s_branch {again}")
        T.label(f"L_{name}_giveup")
        T(f"s_mov_b32 {self.sBud}, 0")
        T(f"s_branch L_{name}_ok")
        self.tail.append(T)

    def sentinel_check(self, A, regs, acc):
        rs = [regs[i] for i in range(regs.n)]
        A(f"v_max3_u32 {acc}, {rs[0]}, {rs[1]}, {rs[2]}")
        k = 3
        while k < len(rs):
            if k + 1 < len(rs):
                A(f"v_max3_u32 {acc}, {acc}, {rs[k]}, {rs[k + 1]}")
                k += 2
            else:
                A(f"v_max_u32 {acc}, {acc}, {rs[k]}")
                k += 1
        A(f"v_cmp_eq_u32 vcc, -1, {acc}")

    def unpack(self, A, dst, src):
        for k in range(src.n):
            A(f"v_lshlrev_b32 {dst[2 * k]}, 16, {src[k]}")
            A(f"v_and_b32 {dst[2 * k + 1]}, 0xffff0000, {src[k]}")

    def cmul(self, A, ore, oim, re, im, c, s, cidx):
        n = re.n // 2
        for k in range(n):
            A(f"v_pk_mul_f32 {pr(ore, 2 * k)}, {pr(re, 2 * k)}, {pr(c, 2 * cidx(k))}")
            A(f"v_pk_mul_f32 {pr(oim, 2 * k)}, {pr(im, 2 * k)}, {pr(c, 2 * cidx(k))}")
        for k in range(n):
            A(f"v_pk_fma_f32 {pr(ore, 2 * k)}, {pr(im, 2 * k)}, {pr(s, 2 * cidx(k))}, {pr(ore, 2 * k)}")
            A(f"v_pk_fma_f32 {pr(oim, 2 * k)}, {pr(re, 2 * k)}, {pr(s, 2 * cidx(k))}, {pr(oim, 2 * k)} neg_lo:[0,1,0] neg_hi:[0,1,0]")

    def packc(self, A, dst, re, im):
        for k in range(dst.n):
            A(f"v_cvt_pk_bf16_f32 {dst[k]}, {re[k]}, {im[k]}")

    def angles(self, A, ang, base_expr, step):
        base_expr(ang[0])
        for i in range(1, ang.n):
            A(f"v_add_f32 {ang[i]}, {ang[i - 1]}, {step}")

    def sincos(self, A, c, s, ang):
        for i in range(ang.n):
            A(f"v_cos_f32 {c[i]}, {ang[i]}")
            A(f"v_sin_f32 {s[i]}, {ang[i]}")

    def row_stats(self, A, xa, xb, t, out, fill=None):
        fill = list(fill.items) if fill is not None else []

        def pad(k):
            for _ in range(k):
                if fill:
                    A.items.append(fill.pop(0))
        for x, o in ((xa, 0), (xb, 4)):
            A(f"v_pk_add_f32 {pr(t, o)}, {pr(x, 0)}, {pr(x, 2)}")
            A(f"v_pk_mul_f32 {pr(t, o + 2)}, {pr(x, 0)}, {pr(x, 0)}")
            A(f"v_pk_add_f32 {pr(t, o)}, {pr(t, o)}, {pr(x, 4)}")
            A(f"v_pk_fma_f32 {pr(t, o + 2)}, {pr(x, 2)}, {pr(x, 2)}, {pr(t, o + 2)}")
            A(f"v_pk_add_f32 {pr(t, o)}, {pr(t, o)}, {pr(x, 6)}")
            A(f"v_pk_fma_f32 {pr(t, o + 2)}, {pr(x, 4)}, {pr(x, 4)}, {pr(t, o + 2)}")
            A(f"v_pk_fma_f32 {pr(t, o + 2)}, {pr(x, 6)}, {pr(x, 6)}, {pr(t, o + 2)}")
        A(f"v_add_f32 {t[0]}, {t[0]}, {t[1]}")
        A(f"v_add_f32 {t[4]}, {t[4]}, {t[5]}")
        A(f"v_add_f32 {t[2]}, {t[2]}, {t[3]}")
        A(f"v_add_f32 {t[6]}, {t[6]}, {t[7]}")
        pad(1)
        A(f"v_permlane32_swap_b32 {t[0]}, {t[4]}")
        A(f"v_permlane32_swap_b32 {t[2]}, {t[6]}")
        A(f"v_add_f32 {t[0]}, {t[0]}, {t[4]}")
        A(f"v_add_f32 {t[2]}, {t[2]}, {t[6]}")
        pad(2)
        A(f"v_permlane16_swap_b32 {t[0]}, {t[2]}")
        A(f"v_add_f32 {t[0]}, {t[0]}, {t[2]}")
        for r in (1, 2, 4, 8):
            pad(2)
            A(f"v_add_f32_dpp {t[0]}, {t[0]}, {t[0]} row_ror:{r} row_mask:0xf bank_mask:0xf")
        A(f"v_mov_b32 {t[1]}, {t[0]}")
        pad(2)
        A(f"v_permlane16_swap_b32 {t[0]}, {t[1]}")
        A(f"v_mul_f32 {t[0]}, {f32(1 / 512)}, {t[0]}")
        A(f"v_mul_f32 {t[2]}, {t[0]}, {t[0]}")
        A(f"v_fmamk_f32 {t[1]}, {t[1]}, {f32(1 / 512)}, {self.vEps}")
        A(f"v_sub_f32 {t[1]}, {t[1]}, {t[2]}")
        A(f"v_max_f32 {t[1]}, {t[1]}, {self.vEps}")
        A(f"v_rsq_f32 {out[0]}, {t[1]}")
        pad(1)
        A(f"v_mul_f32 {out[1]}, {t[0]}, {out[0]}")
        A(f"v_mov_b32 {out[2]}, {out[0]}")
        A(f"v_sub_f32 {out[1]}, 0, {out[1]}")
        A(f"v_mov_b32 {out[3]}, {out[1]}")
        A(f"v_permlane32_swap_b32 {out[0]}, {out[2]}")
        A(f"v_permlane32_swap_b32 {out[1]}, {out[3]}")
        A.items.extend(fill)

    def gemv_reduce(self, A, p, area):
        for k in range(4):
            A(f"v_permlane32_swap_b32 {p[k]}, {p[k + 4]}")
        A(f"v_pk_add_f32 {pr(p, 0)}, {pr(p, 0)}, {pr(p, 4)}")
        A(f"v_pk_add_f32 {pr(p, 2)}, {pr(p, 2)}, {pr(p, 6)}")
        A(f"v_permlane16_swap_b32 {p[0]}, {p[2]}")
        A(f"v_permlane16_swap_b32 {p[1]}, {p[3]}")
        A(f"v_pk_add_f32 {pr(p, 0)}, {pr(p, 0)}, {pr(p, 2)}")
        for r in (2, 4, 8):
            for k in range(2):
                A(f"v_add_f32_dpp {p[k]}, {p[k]}, {p[k]} row_ror:{r} row_mask:0xf bank_mask:0xf")
        A(f"s_mov_b64 exec, {self.sM03}")
        A(f"ds_write_b64 {self.vP0w}, {pr(p, 0)} offset:{area}")
        A("s_mov_b64 exec, -1")

    def gemv_publish(self, A, t, area, vaddr):
        for w in range(4):
            A(f"ds_read_b128 {t[4 * w:4 * w + 4]}, {self.v16L} offset:{area + 64 * w}")
        A(f"v_pk_add_f32 {pr(t, 0)}, {pr(t, 0)}, {pr(t, 4)}")
        A(f"v_pk_add_f32 {pr(t, 2)}, {pr(t, 2)}, {pr(t, 6)}")
        A(f"v_pk_add_f32 {pr(t, 8)}, {pr(t, 8)}, {pr(t, 12)}")
        A(f"v_pk_add_f32 {pr(t, 10)}, {pr(t, 10)}, {pr(t, 14)}")
        A(f"v_pk_add_f32 {pr(t, 0)}, {pr(t, 0)}, {pr(t, 8)}")
        A(f"v_pk_add_f32 {pr(t, 2)}, {pr(t, 2)}, {pr(t, 10)}")
        A(f"v_mov_b32 {t[5]}, {self.sTag}")
        A(f"v_mov_b32 {t[7]}, {self.sTag}")
        A(f"v_cvt_pk_bf16_f32 {t[4]}, {t[0]}, {t[1]}")
        A(f"v_cvt_pk_bf16_f32 {t[6]}, {t[2]}, {t[3]}")
        A("s_mov_b64 exec, 15")
        A(f"global_store_dwordx4 {vaddr}, {t[4:8]}, {self.WS} sc1")
        A("s_mov_b64 exec, -1")

    def silu(self, A, c, t):
        A(f"v_lshlrev_b32 {c}, 16, {c}")
        A(f"v_mul_f32 {t}, {f32(-LOG2E)}, {c}")
        A(f"v_exp_f32 {t}, {t}")
        A(f"v_add_f32 {t}, 1.0, {t}")
        A(f"v_rcp_f32 {t}, {t}")
        A(f"v_mul_f32 {c}, {c}, {t}")
        A(f"v_cvt_pk_bf16_f32 {c}, {c}, {c}")
        A(f"v_and_b32 {c}, 0xffff0000, {c}")

    def w1reg(self, kap, tile):
        if kap < 6:
            return Reg("a", 176 + (kap * 3 + tile) * 4, 4)
        return Reg("v", 136 + ((kap - 6) * 3 + tile) * 4, 4)

    def w2reg(self, phi, dl):
        return Reg("a", (phi * 4 + dl) * 4, 4)

    @staticmethod
    def w2slot(beta):
        hi, b = divmod(beta, 11)
        w, tile = (b // 3, b % 3) if b < 9 else (3, b - 9)
        if tile < 2:
            return 4 * hi + w, tile
        o = 3 * hi + w
        return 8 + o // 2, o % 2

    def dma(self, A, unit, area, slot, tag):
        kind, u = unit
        base = self.sStP if area == "P" else self.sStE
        A(f"s_add_u32 m0, {base}, {slot * 1024}")
        if kind == 1:
            A(f"s_mov_b32 {self.sT0}, {u * 88064}")
            for k in range(3):
                A(f"buffer_load_dwordx4 {self.vW1o[k]}, {self.SW1}, {self.sT0} offen offset:{1024 * k} lds", tag)
        else:
            sx = self.sW2[0] if u < 8 else self.sW2[3] if u in (8, 19) else self.sW2[1] if u < 19 else self.sW2[2]
            A(f"s_add_u32 {self.sT0}, {sx}, {u * 16384}")
            for k in range(2):
                A(f"buffer_load_dwordx4 {self.vW2o[k]}, {self.SW2}, {self.sT0} offen offset:{1024 * k} lds", tag)

    def trread(self, A, unit, area, slot):
        kind, u = unit
        ai = 0 if area == "P" else 1
        if kind == 1:
            for b in range(2):
                blk = 2 * u + b
                kap, h = blk % 16, blk // 16
                for tile in range(3):
                    A(f"ds_read_b64_tr_b16 {pr(self.w1reg(kap, tile), 2 * h)}, {self.vT1[ai]} offset:{slot * 1024 + b * 1536 + tile * 32}")
        else:
            phi, h = self.w2slot(u)
            for dl in range(4):
                A(f"ds_read_b64_tr_b16 {pr(self.w2reg(phi, dl), 2 * h)}, {self.vT2[4 * ai + dl]} offset:{slot * 1024}")

    BATCH = {
        "a": [((1, 0), "E", 0), ((1, 8), "E", 3), ((1, 1), "E", 6), ((1, 9), "P", 0), ((1, 2), "P", 3), ((1, 10), "P", 6)],
        "b": [((2, u), "P", 9 + 2 * u) for u in range(6)],
        "c": [((2, 6 + u), "E", 2 * u) for u in range(4)] + [((2, 10 + u), "P", 2 * u) for u in range(4)],
        "d": [((1, 3), "P", 9), ((1, 11), "P", 12), ((1, 4), "P", 15), ((1, 12), "P", 18)],
        "e": [((1, 5), "E", 0), ((1, 13), "E", 3), ((1, 6), "E", 6), ((1, 14), "P", 0), ((1, 7), "P", 3), ((1, 15), "P", 6)],
        "f": [((2, 14 + u), "P", 2 * u) for u in range(8)],
    }

    def issue(self, A, b):
        A.comment(f"stage weights, batch {b}")
        for unit, area, slot in self.BATCH[b]:
            self.dma(A, unit, area, slot, "dma_" + b)

    def collect(self, A, b):
        A.comment(f"weights batch {b}: LDS -> registers")
        A.wait_tag("dma_" + b)
        for unit, area, slot in self.BATCH[b]:
            self.trread(A, unit, area, slot)

    def build(self):
        A, v, s = self.A, self.v, self.s
        X, WR, WI, W1, B1, W2, C, WM, OUT, WS = (Reg("s", b, 2) for b in (4, 6, 8, 12, 14, 16, 18, 20, 22, 26))
        self.WS = WS
        J = "s2"
        SW1, SW2, SWS, SB1, SWR, SWI = (s(n, 4) for n in ("SW1", "SW2", "SWS", "SB1", "SWR", "SWI"))
        self.SW1, self.SW2 = SW1, SW2
        sTag = self.sTag = s("tag")
        sW, sE, sG, sJJ = s("w"), s("e"), s("G"), s("jj")
        sT0, sT1, sT2, sT3 = s("t0"), s("t1"), s("t2"), s("t3")
        self.sT0 = sT0
        self.sBud = s("bud")
        self.sM03 = s("m03", 2)
        sMN0, sMG0 = s("mn0", 2), s("mg0", 2)
        sRW = s("rw", 3, align=1)
        self.sStP, self.sStE = s("stp"), s("ste")
        self.sW2 = s("w2b", 4, align=1)
        if self.stamps:
            self.vStamp = v("stamp")

        A("s_load_dwordx16 s[4:19], s[0:1], 0")
        A("s_load_dwordx8 s[20:27], s[0:1], 64")
        A(f"s_cmp_ge_u32 {J}, 256")
        A("s_cbranch_scc1 L_end")
        vP0a, vCa, wm1, c1 = v("P0a"), v("Ca"), v("wm1", 4), v("c1")
        A(f"s_and_b32 {sT0}, {J}, 7")
        A(f"s_lshl_b32 {sT0}, {sT0}, 1")
        A(f"s_lshr_b32 {sT1}, {J}, 7")
        A(f"s_add_u32 {sT0}, {sT0}, {sT1}")
        A(f"s_bfe_u32 {sT1}, {J}, 0x20003")
        A(f"s_lshl_b32 {sT2}, {sT0}, 2")
        A(f"s_add_u32 {sT2}, {sT2}, {sT1}")
        A(f"s_bfe_u32 {sT3}, {J}, 0x20005")
        A(f"s_mul_i32 {sT0}, {sT3}, {128 * 6144}")
        A(f"s_lshl_b32 {sT1}, {sT2}, 5")
        A(f"s_add_u32 {sT0}, {sT0}, {sT1}")
        vHalfRow = v("halfrow")
        A(f"v_lshrrev_b32 {vCa}, 1, v0")
        A(f"v_mul_u32_u24 {vHalfRow}, 6144, {vCa}")
        A(f"v_and_b32 {vP0a}, 1, v0")
        A(f"v_lshl_add_u32 {vHalfRow}, {vP0a}, 4, {vHalfRow}")
        A(f"v_add_u32 {vP0a}, {sT0}, {vHalfRow}")
        A(f"s_lshl_b32 {sT1}, {sT3}, 8")
        A(f"v_lshl_add_u32 {vCa}, {vCa}, 1, {sT1}")
        vT16, vClr, ones = v("t16"), v("clr"), v("ones", 4)
        A(f"v_lshlrev_b32 {vT16}, 4, v0")
        A(f"s_lshl_b32 {sT1}, {J}, 13")
        A(f"s_add_u32 {sT1}, {sT1}, {WS_B + 2048}")
        A(f"v_add_u32 {vClr}, {sT1}, {vT16}")
        for k in range(4):
            A(f"v_mov_b32 {ones[k]}, -1")
        A(f"global_load_dwordx4 {wm1}, {vP0a}, {WM}")
        A(f"global_load_ushort {c1}, {vCa}, {C}")
        A(f"s_load_dword {sTag}, {WS}, 0")
        A(f"global_store_dwordx4 {vClr}, {ones}, {WS} offset:-2048 sc1")
        A(f"global_store_dwordx4 {vClr}, {ones}, {WS} offset:2048 sc1")
        self.stamp()
        vPubA = v("pubA")
        vL, vN, vG, v16L = v("L"), v("N"), v("G"), v("16L")
        self.v16L = v16L
        A(f"v_and_b32 {vL}, 63, v0")
        A(f"v_lshlrev_b32 {v16L}, 4, {vL}")
        A(f"s_lshl_b32 {sT3}, {sT3}, 12")
        A(f"s_lshl_b32 {sT2}, {sT2}, 6")
        A(f"s_add_u32 {sT2}, {sT2}, {sT3}")
        A(f"s_add_u32 {sT2}, {sT2}, {WS_A}")
        A(f"v_add_u32 {vPubA}, {sT2}, {v16L}")
        A(f"v_lshrrev_b32 {vN}, 6, v0")
        A(f"v_readfirstlane_b32 {sW}, {vN}")
        A(f"v_and_b32 {vN}, 15, v0")
        A(f"v_lshrrev_b32 {vG}, 4, {vL}")
        A(f"s_lshr_b32 {sE}, {J}, 7")
        A(f"s_and_b32 {sG}, {J}, 31")
        A(f"s_lshr_b32 {sJJ}, {J}, 5")
        A(f"s_mov_b32 {self.sBud}, 200000")
        for r, val in ((self.sM03, 0x00030003), (sMN0, 0x00010001)):
            A(f"s_mov_b32 {r[0]}, {val}")
            A(f"s_mov_b32 {r[1]}, {val}")
        A(f"s_mov_b32 {sMG0[0]}, 0xffff")
        A(f"s_mov_b32 {sMG0[1]}, 0")
        for srd, ptr, n in ((SW1, W1, 512 * 1376 * 2), (SW2, W2, 512 * 1376 * 2), (SWS, WS, WS_END), (SB1, B1, 2752),
                            (SWR, WR, 2048 * 514), (SWI, WI, 2048 * 514)):
            A(f"s_mov_b32 {srd[0]}, {ptr[0]}")
            A(f"s_mov_b32 {srd[1]}, {ptr[1]}")
            A(f"s_mov_b32 {srd[2]}, {n}")
            A(f"s_mov_b32 {srd[3]}, 0x20000")
        for i in range(3):
            A(f"s_mov_b32 {sRW[i]}, {32896 * (i + 1)}")
        self.vP0w = v("P0w")
        self.vEps = v("eps")
        A(f"v_mov_b32 {self.vEps}, {f32(1e-5)}")
        t = v("tmp", 16)
        D = v("D", 32, hi=True)
        self.vW1o, self.vW2o = v("W1o", 3, align=1), v("W2o", 2, align=1)
        self.vT1, self.vT2 = v("T1", 2, align=1), v("T2", 8, align=1)
        A(f"v_and_b32 {t[0]}, 1, v0")
        A(f"v_lshl_add_u32 {t[0]}, {t[0]}, 2, {vG}")
        A(f"s_lshl_b32 {sT0}, {sW}, 6")
        A(f"v_lshl_add_u32 {self.vP0w}, {t[0]}, 3, {sT0}")
        fN, fG4 = v("fN"), v("fG4")
        A(f"v_cvt_f32_u32 {fN}, {vN}")
        A(f"v_lshlrev_b32 {t[0]}, 2, {vG}")
        A(f"v_cvt_f32_u32 {fG4}, {t[0]}")

        S1re, S1im, twc, tws = v("S1re", 4), v("S1im", 4), v("twc", 4), v("tws", 4)
        G2re, G2im, P2re, P2im = v("G2re", 4), v("G2im", 4), v("P2re", 4), v("P2im", 4)
        ang, cs, sn, st = t[0:4], t[4:8], t[8:12], t[12]
        A(f"v_mul_f32 {st}, {f32(1 / 32)}, {fN}")
        for h in range(2):
            def b0(d, h=h):
                if h == 0:
                    A(f"v_mul_f32 {d}, {fG4}, {st}")
                else:
                    A(f"v_add_f32 {t[13]}, {f32(16.0)}, {fG4}")
                    A(f"v_mul_f32 {d}, {t[13]}, {st}")
            self.angles(A, ang, b0, st)
            self.sincos(A, cs, sn, ang)
            for k in range(2):
                A(f"v_cvt_pk_bf16_f32 {S1re[2 * h + k]}, {cs[2 * k]}, {cs[2 * k + 1]}")
                A(f"v_cvt_pk_bf16_f32 {S1im[2 * h + k]}, -{sn[2 * k]}, -{sn[2 * k + 1]}")
        A(f"s_mov_b64 exec, {sMN0}")
        for k in range(4):
            A(f"v_mov_b32 {S1im[k]}, 0xbf803f80")
        A("s_mov_b64 exec, -1")
        A(f"v_mul_f32 {st}, {f32(1 / 512)}, {fN}")
        self.angles(A, ang, lambda d: A(f"v_mul_f32 {d}, {fG4}, {st}"), st)
        self.sincos(A, twc, tws, ang)
        A(f"v_mul_f32 {st}, {f32(1 / 16)}, {fN}")
        self.angles(A, ang, lambda d: A(f"v_mul_f32 {d}, {fG4}, {st}"), st)
        self.sincos(A, cs, sn, ang)
        A(f"v_lshrrev_b32 {t[13]}, 3, {vN}")
        A(f"v_mul_lo_u32 {t[14]}, {t[13]}, {self.vconst(A, t[15], 0x80008000)}")
        for i in range(4):
            A(f"v_cvt_pk_bf16_f32 {G2re[i]}, {cs[i]}, {sn[i]}")
            A(f"v_cvt_pk_bf16_f32 {G2im[i]}, -{sn[i]}, {cs[i]}")
            A(f"v_xor_b32 {G2im[i]}, {G2im[i]}, {t[14]}")
        A(f"v_cvt_f32_u32 {t[14]}, {t[13]}")
        A(f"v_fmac_f32 {st}, {f32(-15 / 32)}, {t[14]}")
        A(f"v_lshlrev_b32 {t[13]}, 4, {t[13]}")
        self.angles(A, ang, lambda d: A(f"v_mul_f32 {d}, {fG4}, {st}"), st)
        self.sincos(A, cs, sn, ang)
        A(f"s_mov_b64 exec, {sMN0}")
        for i in range(4):
            A(f"v_mov_b32 {sn[i]}, {'-1.0' if i % 2 == 0 else '1.0'}")
        A("s_mov_b64 exec, -1")
        for i in range(4):
            A(f"v_cvt_pk_bf16_f32 {P2re[i]}, {cs[i]}, 0")
            A(f"v_cvt_pk_bf16_f32 {P2im[i]}, -{sn[i]}, 0")
            A(f"v_lshlrev_b32 {P2re[i]}, {t[13]}, {P2re[i]}")
            A(f"v_lshlrev_b32 {P2im[i]}, {t[13]}, {P2im[i]}")

        vKa, vM0, vPL = v("ka"), v("m0"), v("PL")
        A(f"s_and_b32 {sT0}, {sW}, 1")
        A(f"s_lshl_b32 {sT0}, {sT0}, 3")
        A(f"v_lshl_add_u32 {vKa}, {vG}, 1, {sT0}")
        A(f"v_bfe_u32 {t[0]}, {vL}, 1, 1")
        A(f"v_add_u32 {vKa}, {vKa}, {t[0]}")
        A(f"s_lshr_b32 {sT1}, {sW}, 1")
        A(f"v_bfe_u32 {t[1]}, {vL}, 2, 2")
        A(f"s_lshl_b32 {sT2}, {sT1}, 2")
        A(f"v_add_u32 {vM0}, {sT2}, {t[1]}")
        A(f"s_lshl_b32 {sT1}, {sT1}, 8")
        A(f"v_lshl_add_u32 {vPL}, {vKa}, 4, {sT1}")
        A(f"v_lshl_add_u32 {vPL}, {t[1]}, 2, {vPL}")
        A(f"v_and_b32 {t[2]}, 1, {vL}")
        A(f"v_mad_u32_u24 {vPL}, {t[2]}, {self.vconst(A, t[3], 1088)}, {vPL}")
        vWo, vWst = v("Wo", 2), v("Wst", 2)
        A(f"s_and_b32 {sT0}, {J}, 15")
        A(f"s_lshl_b32 {sT0}, {sT0}, 2")
        A(f"s_add_u32 {sT0}, {sT0}, {sE}")
        A(f"s_bfe_u32 {sT1}, {J}, 0x30004")
        A(f"s_lshl_b32 {sT1}, {sT1}, 8")
        sK0 = s("k0")
        A(f"s_add_u32 {sK0}, {sT0}, {sT1}")
        A(f"v_lshl_add_u32 {t[4]}, {t[2]}, 1, {sK0}")
        A(f"v_mul_u32_u24 {t[4]}, 514, {t[4]}")
        A(f"v_lshl_add_u32 {t[5]}, {vM0}, 5, {vKa}")
        A(f"v_lshl_add_u32 {vWo[0]}, {t[5]}, 1, {t[4]}")
        A(f"v_sub_u32 {t[6]}, 256, {t[5]}")
        A(f"v_add_u32 {t[7]}, 16, {t[5]}")
        A(f"v_cmp_eq_u32 vcc, 0, {vKa}")
        A(f"v_cndmask_b32 {t[6]}, {t[6]}, {t[7]}, vcc")
        A(f"v_lshl_add_u32 {vWo[1]}, {t[6]}, 1, {t[4]}")
        vPc = v("pc")
        A(f"v_lshrrev_b32 {vPc}, 2, v0")
        A(f"v_and_b32 {t[8]}, 3, {vL}")
        A(f"v_lshlrev_b32 {t[8]}, 4, {t[8]}")
        A(f"s_and_b32 {sT0}, {J}, 127")
        A(f"s_lshl_b32 {sT0}, {sT0}, 6")
        A(f"s_lshl_b32 {sT1}, {sE}, 20")
        A(f"s_add_u32 {sT1}, {sT1}, {sT0}")
        A(f"s_add_u32 {sT1}, {sT1}, {WS_WT}")
        A(f"v_lshl_add_u32 {vWst[0]}, {vPc}, 13, {t[8]}")
        A(f"v_add_u32 {vWst[0]}, {sT1}, {vWst[0]}")
        A(f"v_add_u32 {vWst[1]}, {64 * 8192}, {vWst[0]}")
        vBst = v("Bst", 2)
        A(f"s_bfe_u32 {sT0}, {J}, 0x20002")
        A(f"s_lshl_b32 {sT0}, {sT0}, 12")
        A(f"s_lshr_b32 {sT1}, {J}, 4")
        A(f"s_lshl_b32 {sT1}, {sT1}, 8")
        A(f"s_add_u32 {sT0}, {sT0}, {sT1}")
        A(f"s_and_b32 {sT1}, {J}, 3")
        A(f"s_lshl_b32 {sT1}, {sT1}, 6")
        A(f"s_add_u32 {sT0}, {sT0}, {sT1}")
        A(f"s_add_u32 {sT0}, {sT0}, {WS_B}")
        A(f"v_lshl_add_u32 {vBst[0]}, {vPc}, 14, {t[8]}")
        A(f"v_add_u32 {vBst[0]}, {sT0}, {vBst[0]}")
        A(f"v_add_u32 {vBst[1]}, {64 * 16384}, {vBst[0]}")
        self.V.release("pc", "ka", "m0")
        sRow = s("row")
        A(f"s_lshr_b32 {sT0}, {J}, 4")
        A(f"s_lshl_b32 {sT0}, {sT0}, 2")
        A(f"s_add_u32 {sT0}, {sT0}, {sW}")
        A(f"s_lshl_b32 {sT0}, {sT0}, 5")
        A(f"s_and_b32 {sT1}, {J}, 15")
        A(f"s_lshl_b32 {sT1}, {sT1}, 1")
        A(f"s_add_u32 {sT0}, {sT0}, {sT1}")
        A(f"s_lshl_b32 {sRow}, {sT0}, 10")
        vXa = v("xa")
        A(f"v_add_u32 {vXa}, {sRow}, {v16L}")

        p = t[0:8]
        self.silu(A, c1, t[8])
        self.unpack(A, p, wm1)
        self.stamp()
        A(f"v_mov_b32 {t[8]}, {c1}")
        for k in range(4):
            A(f"v_pk_mul_f32 {pr(p, 2 * k)}, {pr(p, 2 * k)}, {pr(t, 8)} op_sel_hi:[1,0]")
        self.gemv_reduce(A, p, L_P0)
        A(f"s_mul_i32 {sTag}, {sTag}, 1664525")
        A(f"s_add_u32 {sTag}, {sTag}, 1013904223")
        A.drain()
        A("s_barrier")
        A(f"s_cmp_lg_u32 {sW}, 0")
        A("s_cbranch_scc1 L_pubA")
        A.cond_begin()
        self.gemv_publish(A, t, L_P0, vPubA)
        A.cond_end()
        A.label("L_pubA")
        self.stamp()
        self.V.release("wm1", "c1", "P0a", "Ca", "pubA")

        Wt, Wti = v("Wt", 8), D[0:8]
        for u in range(2):
            for i in range(4):
                so = "0" if i == 0 else sRW[i - 1]
                A(f"buffer_load_ushort {Wt[4 * u + i]}, {vWo[u]}, {SWR}, {so} offen")
                A(f"buffer_load_ushort {Wti[4 * u + i]}, {vWo[u]}, {SWI}, {so} offen")
        xr = v("xr", 8)
        A(f"global_load_dwordx4 {xr[0:4]}, {vXa}, {X}")
        A(f"global_load_dwordx4 {xr[4:8]}, {vXa}, {X} offset:1024")
        A(f"v_add_u32 {vClr}, {WS_C - WS_B}, {vClr}")
        A(f"global_store_dwordx4 {vClr}, {ones}, {WS} offset:-2048 sc1")
        A(f"global_store_dwordx4 {vClr}, {ones}, {WS} offset:2048 sc1")
        A(f"s_cmp_lg_u32 {sW}, 0")
        A("s_cbranch_scc1 L_w256a")
        A.cond_begin()
        Ws, vSo, Wsi = v("Ws", 4), v("So", 4), D[8:12]
        A(f"v_and_b32 {t[0]}, 1, {vL}")
        A(f"v_lshl_add_u32 {t[0]}, {t[0]}, 1, {sK0}")
        A(f"v_bfe_u32 {t[1]}, {vL}, 1, 1")
        A(f"v_lshlrev_b32 {t[1]}, 9, {t[1]}")
        A(f"v_and_b32 {t[2]}, 4, {vL}")
        A(f"v_cmp_ne_u32 vcc, 0, {t[2]}")
        for i in range(4):
            A(f"v_add_u32 {t[3]}, {64 * i}, {t[0]}")
            A(f"v_sub_u32 {t[4]}, 2048, {t[3]}")
            A(f"v_and_b32 {t[4]}, 2047, {t[4]}")
            A(f"v_cndmask_b32 {t[3]}, {t[3]}, {t[4]}, vcc")
            A(f"v_mad_u32_u24 {vSo[i]}, {t[3]}, {self.vconst(A, t[5], 514) if i == 0 else t[5]}, {t[1]}")
        for i in range(4):
            A(f"buffer_load_ushort {Ws[i]}, {vSo[i]}, {SWR}, 0 offen")
            A(f"buffer_load_ushort {Wsi[i]}, {vSo[i]}, {SWI}, 0 offen")
        A.cond_end()
        A.label("L_w256a")

        C1, C2, tfc, tfs, tic, tis = (v(n_, k_, hi=True) for n_, k_ in (("C1", 32), ("C2", 32), ("tfc", 4), ("tfs", 4), ("tic", 8), ("tis", 8)))
        fE = v("fE")
        A(f"v_cvt_f32_u32 {fE}, {sE}")
        fA = t[13]
        for ah in range(2):
            A(f"v_fma_f32 {fA}, {fN}, 2.0, {fE}")
            if ah:
                A(f"v_add_f32 {fA}, {f32(32.0)}, {fA}")
            A(f"v_mul_f32 {st}, {f32(1 / 64)}, {fA}")
            for kap in range(2):
                self.cplx_const(A, C1, (ah * 2 + kap) * 8, t, fG4, kap)
            A(f"v_mul_f32 {st}, {f32(1 / 2048)}, {fA}")
            A(f"s_lshl_b32 {sT0}, {sW}, 3")
            A(f"v_cvt_f32_u32 {t[14]}, {sT0}")
            A(f"v_fmac_f32 {t[14]}, 0.5, {fG4}")
            self.angles(A, ang[0:2], lambda d: A(f"v_mul_f32 {d}, {t[14]}, {st}"), st)
            self.sincos(A, tfc[2 * ah:2 * ah + 2], tfs[2 * ah:2 * ah + 2], ang[0:2])
        for tt in range(2):
            A(f"v_add_f32 {fA}, {f32(16.0 * tt)}, {fN}")
            A(f"v_mul_f32 {st}, {f32(1 / 32)}, {fA}")
            for kap in range(2):
                self.cplx_const(A, C2, (tt * 2 + kap) * 8, t, fG4, kap)
            A(f"s_and_b32 {sT0}, {sW}, 1")
            A(f"s_lshl_b32 {sT0}, {sT0}, 5")
            A(f"s_add_u32 {sT0}, {sT0}, {sE}")
            A(f"v_cvt_f32_u32 {t[14]}, {sT0}")
            A(f"v_fmac_f32 {t[14]}, 2.0, {fG4}")
            A(f"v_mul_f32 {t[15]}, {f32(1 / 2048)}, {fA}")
            A(f"v_mul_f32 {st}, {f32(1 / 1024)}, {fA}")
            self.angles(A, ang, lambda d: A(f"v_mul_f32 {d}, {t[14]}, {t[15]}"), st)
            self.sincos(A, tic[4 * tt:4 * tt + 4], tis[4 * tt:4 * tt + 4], ang)
        self.V.release("fE")

        for u in range(2):
            for i in range(4):
                A(f"v_lshl_or_b32 {Wt[4 * u + i]}, {Wti[4 * u + i]}, 16, {Wt[4 * u + i]}")
            A(f"global_store_dwordx4 {vWst[u]}, {Wt[4 * u:4 * u + 4]}, {WS} sc1")
        A(f"s_cmp_lg_u32 {sW}, 0")
        A("s_cbranch_scc1 L_w256b")
        A.cond_begin()
        for i in range(4):
            A(f"v_lshlrev_b32 {t[2 * i]}, 16, {Ws[i]}")
            A(f"v_lshlrev_b32 {t[2 * i + 1]}, 16, {Wsi[i]}")
        A(f"v_and_b32 {t[8]}, 2, {vL}")
        A(f"v_cvt_f32_u32 {t[8]}, {t[8]}")
        A(f"v_sub_f32 {t[8]}, 1.0, {t[8]}")
        for i in range(4):
            A(f"v_add_f32_dpp {t[2 * i]}, {t[2 * i]}, {t[2 * i]} row_shl:4 row_mask:0xf bank_mask:0xf")
            A(f"v_subrev_f32_dpp {t[2 * i + 1]}, {t[2 * i + 1]}, {t[2 * i + 1]} row_shl:4 row_mask:0xf bank_mask:0xf")
        for k in range(8):
            A(f"v_mul_f32 {t[9]}, {t[8]}, {t[k]}")
            A(f"v_add_f32_dpp {t[k]}, {t[k]}, {t[9]} quad_perm:[2,3,0,1] row_mask:0xf bank_mask:0xf")
        for k in range(8):
            A(f"v_mul_f32 {t[k]}, {f32(0.25)}, {t[k]}")
        for i in range(4):
            A(f"v_cvt_pk_bf16_f32 {Ws[i]}, {t[2 * i]}, {t[2 * i + 1]}")
        A(f"s_lshl_b32 {sT0}, {J}, 6")
        A(f"s_add_u32 {sT0}, {sT0}, {WS_W256}")
        A(f"v_add_u32 {t[9]}, {sT0}, {v16L}")
        A("s_mov_b64 exec, 15")
        A(f"global_store_dwordx4 {t[9]}, {Ws}, {WS} sc1")
        A("s_mov_b64 exec, -1")
        A.cond_end()
        A.label("L_w256b")
        self.V.release("Ws", "So", "Wt", "Wo", "Wst")
        self.S.release("k0", "rw")

        sCol = s("col0")
        A(f"s_mul_i32 {sT0}, {sJJ}, 176")
        A(f"s_mul_i32 {sT1}, {sW}, 48")
        A(f"s_add_u32 {sCol}, {sT0}, {sT1}")
        A(f"s_cmp_eq_u32 {sJJ}, 7")
        A(f"s_cselect_b32 {sT0}, 16, 0")
        A(f"s_sub_u32 {sCol}, {sCol}, {sT0}")
        A(f"s_cmp_eq_u32 {sW}, 3")
        A(f"s_cselect_b32 {sT0}, 16, 0")
        A(f"s_cmp_ge_u32 {sJJ}, 6")
        A(f"s_cselect_b32 {sT0}, {sT0}, 0")
        A(f"s_sub_u32 {sCol}, {sCol}, {sT0}")
        A(f"s_lshl_b32 {sCol}, {sCol}, 1")
        for k in range(3):
            A(f"v_add_u32 {t[0]}, {64 * k}, {vL}")
            A(f"v_mul_u32_u24 {t[1]}, 171, {t[0]}")
            A(f"v_lshrrev_b32 {t[1]}, 10, {t[1]}")
            A(f"v_mul_u32_u24 {t[2]}, {2752 - 96}, {t[1]}")
            A(f"v_lshl_add_u32 {t[2]}, {t[0]}, 4, {t[2]}")
            A(f"s_sub_u32 {sT0}, {sCol}, {1024 * k}")
            A(f"v_add_u32 {self.vW1o[k]}, {sT0}, {t[2]}")
        A(f"v_bfe_u32 {t[0]}, {vL}, 1, 2")
        A(f"v_xor_b32 {t[0]}, {t[0]}, {vG}")
        A(f"v_lshrrev_b32 {t[1]}, 3, {vL}")
        A(f"v_lshlrev_b32 {t[1]}, 10, {t[1]}")
        A(f"v_lshl_add_u32 {t[1]}, {t[0]}, 5, {t[1]}")
        A(f"v_and_b32 {t[0]}, 1, {vL}")
        A(f"v_lshl_add_u32 {t[1]}, {t[0]}, 4, {t[1]}")
        A(f"s_lshl_b32 {sT0}, {sJJ}, 7")
        A(f"v_add_u32 {self.vW2o[0]}, {sT0}, {t[1]}")
        A(f"v_add_u32 {self.vW2o[1]}, 7168, {self.vW2o[0]}")
        A(f"s_mul_i32 {self.sW2[0]}, {sW}, {352 * 1024}")
        A(f"s_cmp_eq_u32 {sW}, 3")
        A(f"s_cselect_b32 {sT0}, 16384, 0")
        A(f"s_cselect_b32 {sT1}, 0x1000000, 0")
        A(f"s_sub_u32 {self.sW2[1]}, {self.sW2[0]}, {sT0}")
        A(f"s_sub_u32 {self.sW2[2]}, {self.sW2[1]}, {sT0}")
        A(f"s_add_u32 {self.sW2[3]}, {self.sW2[0]}, {sT1}")
        A(f"s_mul_i32 {self.sStP}, {sW}, {STP_W}")
        A(f"s_add_u32 {self.sStP}, {self.sStP}, {L_STP}")
        A(f"s_mul_i32 {self.sStE}, {sW}, {STE_W}")
        A(f"s_add_u32 {self.sStE}, {self.sStE}, {L_STE}")
        A(f"v_lshrrev_b32 {t[0]}, 2, {vL}")
        A(f"v_and_b32 {t[1]}, 3, {vL}")
        A(f"v_lshlrev_b32 {t[1]}, 3, {t[1]}")
        A(f"v_mad_u32_u24 {t[2]}, {t[0]}, {self.vconst(A, t[3], 96)}, {t[1]}")
        A(f"v_add_u32 {self.vT1[0]}, {self.sStP}, {t[2]}")
        A(f"v_add_u32 {self.vT1[1]}, {self.sStE}, {t[2]}")
        A(f"v_lshl_add_u32 {t[2]}, {t[0]}, 7, {t[1]}")
        A(f"v_bfe_u32 {t[3]}, {vL}, 3, 2")
        for dl in range(4):
            A(f"s_add_u32 {sT0}, {sW}, {dl}")
            A(f"s_and_b32 {sT0}, {sT0}, 3")
            A(f"v_xor_b32 {t[4]}, {sT0}, {t[3]}")
            A(f"v_lshl_add_u32 {t[4]}, {t[4]}, 5, {t[2]}")
            A(f"v_add_u32 {self.vT2[dl]}, {self.sStP}, {t[4]}")
            A(f"v_add_u32 {self.vT2[4 + dl]}, {self.sStE}, {t[4]}")

        vM2a, vC2, vPubM = v("M2a", 2), v("C2a"), v("pubM")
        A(f"s_and_b32 {sT0}, {J}, 7")
        A(f"s_lshl_b32 {sT0}, {sT0}, 2")
        A(f"s_lshr_b32 {sT1}, {J}, 6")
        A(f"s_add_u32 {sT0}, {sT0}, {sT1}")
        A(f"s_lshl_b32 {sT0}, {sT0}, 2")
        A(f"s_bfe_u32 {sT1}, {J}, 0x20003")
        A(f"s_add_u32 {sT0}, {sT0}, {sT1}")
        A(f"s_bfe_u32 {sT2}, {J}, 0x10005")
        A(f"s_mul_i32 {sT1}, {sT2}, {256 * 6144}")
        A(f"s_lshl_b32 {sT3}, {sT0}, 5")
        A(f"s_add_u32 {sT1}, {sT1}, {sT3}")
        A(f"s_add_u32 {sT1}, {sT1}, 2048")
        A(f"v_add_u32 {vM2a[0]}, {sT1}, {vHalfRow}")
        A(f"v_add_u32 {vM2a[1]}, {128 * 6144}, {vM2a[0]}")
        A(f"s_lshl_b32 {sT1}, {sT2}, 9")
        A(f"v_and_b32 {vC2}, 0xfe, v0")
        A(f"v_add_u32 {vC2}, {sT1}, {vC2}")
        A(f"s_lshl_b32 {sT2}, {sT2}, 13")
        A(f"s_lshl_b32 {sT0}, {sT0}, 6")
        A(f"s_add_u32 {sT0}, {sT0}, {sT2}")
        A(f"s_add_u32 {sT0}, {sT0}, {WS_M2}")
        A(f"v_add_u32 {vPubM}, {sT0}, {v16L}")
        self.V.release("halfrow")
        wm2, c2 = v("wm2", 8), v("c2", 2)

        def mod2_loads():
            for k in range(2):
                A(f"global_load_dwordx4 {wm2[4 * k:4 * k + 4]}, {vM2a[k]}, {WM}")
                A(f"global_load_ushort {c2[k]}, {vC2}, {C} offset:{256 * k}")

        nx, lnp = v("nx", 16), v("lnp", 4)
        self.unpack(A, nx, xr)
        self.row_stats(A, nx[0:8], nx[8:16], t[0:8], lnp)
        for r in range(2):
            for k in range(4):
                A(f"v_pk_fma_f32 {pr(nx, 8 * r + 2 * k)}, {pr(nx, 8 * r + 2 * k)}, {pr(lnp, 2 * r)}, {pr(lnp, 2 * r)} op_sel:[0,0,1] op_sel_hi:[1,0,1]")
        self.V.release("xr", "xa")
        vGa, vMw, vRowW, vRowR, vPlW = v("Ga", 2), v("Mw"), v("rowW"), v("rowR"), v("plW")
        A(f"v_add_u32 {vGa[0]}, {WS_A + 2048}, {vT16}")
        A(f"v_add_u32 {vGa[1]}, {WS_A + 2048 + 8192}, {vT16}")
        A(f"v_and_b32 {t[0]}, 1, v0")
        A(f"v_lshlrev_b32 {t[0]}, 10, {t[0]}")
        A(f"v_bfe_u32 {t[1]}, v0, 1, 6")
        A(f"v_lshl_add_u32 {t[0]}, {t[1]}, 4, {t[0]}")
        A(f"v_lshrrev_b32 {t[1]}, 7, v0")
        A(f"v_lshl_add_u32 {vMw}, {t[1]}, 11, {t[0]}")
        A(f"s_lshl_b32 {sT0}, {sW}, 11")
        A(f"v_add_u32 {vRowW}, {sT0}, {v16L}")
        A(f"v_lshl_add_u32 {vRowR}, {vL}, 3, {sT0}")
        A(f"s_mul_i32 {sT0}, {sW}, 2304")
        A(f"v_add_u32 {vPlW}, {sT0}, {v16L}")
        sOne = s("one", 2)
        A(f"s_cmp_ge_u32 {sW}, 2")
        A(f"s_cselect_b32 {sOne[0]}, 1.0, 0")
        A(f"s_mov_b32 {sOne[1]}, {sOne[0]}")
        if self.opt["mod2_at"] == "WA":
            mod2_loads()

        ga = D[16:32]
        self.stamp()
        A.label("L_A")
        for kq in range(4):
            A(f"global_load_dwordx4 {ga[4 * kq:4 * kq + 4]}, {vGa[kq // 2]}, {WS} offset:{-2048 + 4096 * (kq % 2)} sc1")
        A.drain(lgkm=False)
        A(f"v_sad_u32 {t[0]}, {ga[1]}, {sTag}, 0")
        for k in range(3, 16, 2):
            A(f"v_sad_u32 {t[0]}, {ga[k]}, {sTag}, {t[0]}")
        A(f"v_cmp_ne_u32 vcc, 0, {t[0]}")
        self.retry("A", "L_A")
        self.stamp()
        if self.opt["mod2_at"] == "P1":
            mod2_loads()
        self.issue(A, "a")
        for kq in range(4):
            self.unpack(A, t[4 * kq:4 * kq + 2], ga[4 * kq])
            self.unpack(A, t[4 * kq + 2:4 * kq + 4], ga[4 * kq + 2])
        A(f"v_pk_add_f32 {pr(t, 0)}, {pr(t, 0)}, {pr(t, 4)}")
        A(f"v_pk_add_f32 {pr(t, 2)}, {pr(t, 2)}, {pr(t, 6)}")
        A(f"v_pk_add_f32 {pr(t, 8)}, {pr(t, 8)}, {pr(t, 12)}")
        A(f"v_pk_add_f32 {pr(t, 10)}, {pr(t, 10)}, {pr(t, 14)}")
        A(f"v_pk_add_f32 {pr(t, 0)}, {pr(t, 0)}, {sOne}")
        A(f"v_pk_add_f32 {pr(t, 2)}, {pr(t, 2)}, {sOne}")
        A(f"v_pk_add_f32 {pr(t, 0)}, {pr(t, 0)}, {pr(t, 8)}")
        A(f"v_pk_add_f32 {pr(t, 2)}, {pr(t, 2)}, {pr(t, 10)}")
        A(f"ds_write_b128 {vMw}, {t[0:4]} offset:{L_MODF}")
        self.barrier()
        self.S.release("one")
        for k in range(4):
            A(f"ds_read_b128 {ga[4 * k:4 * k + 4]}, {v16L} offset:{L_MODF + 1024 * k}")

        for r in range(2):
            for k in range(4):
                A(f"v_pk_fma_f32 {pr(nx, 8 * r + 2 * k)}, {pr(nx, 8 * r + 2 * k)}, {pr(ga, 8 + 2 * k)}, {pr(ga, 2 * k)}")
            for k in range(4):
                A(f"v_cvt_pk_bf16_f32 {t[4 * r + k]}, {nx[8 * r + 2 * k]}, {nx[8 * r + 2 * k + 1]}")
            A(f"ds_write_b128 {vRowW}, {t[4 * r:4 * r + 4]} offset:{L_ROW + 1024 * r}", "row")
        A.wait_tag("row")
        for r in range(2):
            for h in range(2):
                A(f"ds_read_b64_tr_b16 {pr(t, 8 + 4 * r + 2 * h)}, {vRowR} offset:{L_ROW + 1024 * r + 512 * h}")
        for r in range(2):
            A(f"v_mfma_f32_16x16x32_bf16 {D[4 * r:4 * r + 4]}, {t[8 + 4 * r:12 + 4 * r]}, {S1re}, 0")
            A(f"v_mfma_f32_16x16x32_bf16 {D[8 + 4 * r:12 + 4 * r]}, {t[8 + 4 * r:12 + 4 * r]}, {S1im}, 0")
        self.cmul(A, nx[0:8], nx[8:16], D[0:8], D[8:16], twc, tws, lambda k: k % 2)
        self.packc(A, t[0:8], nx[0:8], nx[8:16])
        for r in range(2):
            for k, m in enumerate((G2re, G2im, P2re, P2im)):
                A(f"v_mfma_f32_16x16x32_bf16 {D[8 * k + 4 * r:8 * k + 4 * r + 4]}, {m}, {t[4 * r:4 * r + 4]}, 0")
        self.packc(A, t[8:16], D[0:8], D[8:16])
        A(f"s_mov_b64 exec, {sMN0}")
        self.packc(A, t[8:16], D[16:24], D[24:32])
        A("s_mov_b64 exec, -1")
        for r in range(2):
            A(f"ds_write_b128 {vPlW}, {t[8 + 4 * r:12 + 4 * r]} offset:{L_PL + 1088 * r}")
        self.barrier()
        for u in range(2):
            for h in range(2):
                A(f"ds_read2st64_b32 {pr(t, 4 * u + 2 * h)}, {vPL} offset0:{2 * u + 18 * h} offset1:{2 * u + 18 * h + 9}")
        for u in range(2):
            A(f"global_store_dwordx4 {vBst[u]}, {t[4 * u:4 * u + 4]}, {WS} sc1")
        self.stamp()
        self.V.release("S1re", "S1im", "G2re", "G2im", "P2re", "P2im", "nx", "Ga", "Mw", "rowW", "rowR", "Bst")

        self.issue(A, "b")
        A(f"v_add_u32 {vClr}, {WS_D - WS_C}, {vClr}")
        A(f"global_store_dwordx4 {vClr}, {ones}, {WS} offset:-2048 sc1")
        A(f"global_store_dwordx4 {vClr}, {ones}, {WS} offset:2048 sc1")

        def act_clear():
            A(f"s_mul_i32 {sT0}, {J}, 24576")
            A(f"s_add_u32 {sT0}, {sT0}, {WS_ACT + 2048}")
            A(f"v_add_u32 {vClr}, {sT0}, {vT16}")
            for k in range(3):
                A(f"global_store_dwordx4 {vClr}, {ones}, {WS} offset:-2048 sc1")
                A(f"global_store_dwordx4 {vClr}, {ones}, {WS} offset:2048 sc1")
                if k < 2:
                    A(f"v_add_u32 {vClr}, 8192, {vClr}")
        if self.opt["actclr_at"] == "WB":
            act_clear()
        A(f"s_cmp_lg_u32 {J}, 0")
        A("s_cbranch_scc1 L_epoch")
        A.cond_begin()
        A(f"v_mov_b32 {t[0]}, 0")
        A(f"v_mov_b32 {t[1]}, {sTag}")
        A("s_mov_b64 exec, 1")
        A(f"global_store_dword {t[0]}, {t[1]}, {WS} sc1")
        A("s_mov_b64 exec, -1")
        A.cond_end()
        A.label("L_epoch")

        if self.opt["mod2_at"] == "WB":
            mod2_loads()
        self.silu(A, c2[0], t[8])
        self.silu(A, c2[1], t[8])
        self.unpack(A, t[0:8], wm2[0:4])
        self.unpack(A, t[8:16], wm2[4:8])
        for k in range(4):
            A(f"v_pk_mul_f32 {pr(t, 2 * k)}, {pr(t, 2 * k)}, {c2} op_sel_hi:[1,0]")
        for k in range(4):
            A(f"v_pk_fma_f32 {pr(t, 2 * k)}, {pr(t, 8 + 2 * k)}, {c2}, {pr(t, 2 * k)} op_sel:[0,1,0] op_sel_hi:[1,1,1]")
        self.gemv_reduce(A, t[0:8], L_P0 + 256)
        self.barrier()
        A(f"s_cmp_lg_u32 {sW}, 1")
        A("s_cbranch_scc1 L_pubM")
        A.cond_begin()
        self.gemv_publish(A, t, L_P0 + 256, vPubM)
        A.cond_end()
        A.label("L_pubM")
        self.V.release("wm2", "c2", "M2a", "C2a", "pubM", "P0w")
        self.collect(A, "a")

        vBl, vWl, vX1w, vXr, vX2w, vCst = v("Bl"), v("Wl"), v("X1w"), v("Xr"), v("X2w"), v("Cst", 2)
        A(f"s_and_b32 {sT0}, {J}, 127")
        A(f"s_lshl_b32 {sT1}, {sT0}, 14")
        A(f"s_lshl_b32 {sT2}, {sW}, 12")
        A(f"s_add_u32 {sT1}, {sT1}, {sT2}")
        A(f"s_add_u32 {sT1}, {sT1}, {WS_B}")
        A(f"v_add_u32 {vBl}, {sT1}, {v16L}")
        sSpec = s("spec")
        A(f"s_lshr_b32 {sT2}, {sW}, 1")
        A(f"s_or_b32 {sSpec}, {sT0}, {sT2}")
        A(f"s_lshl_b32 {sT1}, {J}, 13")
        A(f"s_add_u32 {sT1}, {sT1}, {WS_WT + 2048}")
        A(f"s_lshl_b32 {sT3}, {sE}, 13")
        A(f"s_add_u32 {sT3}, {sT3}, {WS_W256 + 2048}")
        A(f"s_cmp_eq_u32 {sSpec}, 0")
        A(f"s_cselect_b32 {sT1}, {sT3}, {sT1}")
        A(f"s_lshl_b32 {sT2}, {sT2}, 5")
        A(f"s_add_u32 {sT1}, {sT1}, {sT2}")
        A(f"s_and_b32 {sT2}, {sW}, 1")
        A(f"s_lshl_b32 {sT3}, {sT2}, 9")
        A(f"s_add_u32 {sT1}, {sT1}, {sT3}")
        A(f"v_lshrrev_b32 {t[0]}, 1, {vN}")
        A(f"v_lshlrev_b32 {t[1]}, 6, {t[0]}")
        A(f"v_lshl_add_u32 {t[1]}, {vG}, 10, {t[1]}")
        A(f"v_and_b32 {t[2]}, 1, {vN}")
        A(f"v_lshl_add_u32 {t[1]}, {t[2]}, 4, {t[1]}")
        A(f"v_add_u32 {vWl}, {sT1}, {t[1]}")
        Wq, Wf = v("Wq", 8), v("Wf", 16)
        for tt in range(2):
            A(f"global_load_dwordx4 {Wq[4 * tt:4 * tt + 4]}, {vWl}, {WS} offset:{-2048 + 4096 * tt} sc1")
        A(f"s_lshl_b32 {sT1}, {sW}, 9")
        A(f"v_lshrrev_b32 {t[3]}, 1, {vG}")
        A(f"v_lshl_add_u32 {t[3]}, {t[3]}, 4, {vN}")
        A(f"v_lshl_add_u32 {t[3]}, {t[3]}, 4, {sT1}")
        A(f"v_and_b32 {t[4]}, 1, {vG}")
        A(f"v_lshl_add_u32 {vX1w}, {t[4]}, 3, {t[3]}")
        A(f"s_lshl_b32 {sT1}, {sW}, 11")
        A(f"v_add_u32 {vXr}, {sT1}, {v16L}")
        A(f"v_and_b32 {t[3]}, 3, {t[0]}")
        A(f"v_lshl_add_u32 {t[3]}, {t[3]}, 2, {t[2]}")
        A(f"v_lshl_add_u32 {t[3]}, {vG}, 4, {t[3]}")
        A(f"v_lshrrev_b32 {t[4]}, 3, {vN}")
        A(f"v_lshlrev_b32 {t[4]}, 11, {t[4]}")
        A(f"v_lshl_add_u32 {t[3]}, {t[3]}, 4, {t[4]}")
        A(f"s_lshl_b32 {sT2}, {sT2}, 10")
        A(f"s_lshr_b32 {sT3}, {sW}, 1")
        A(f"s_lshl_b32 {sT3}, {sT3}, 5")
        A(f"s_add_u32 {sT2}, {sT2}, {sT3}")
        A(f"v_add_u32 {vX2w}, {sT2}, {t[3]}")
        A(f"v_lshrrev_b32 {t[3]}, 2, {vN}")
        A(f"v_lshl_add_u32 {t[3]}, {vG}, 4, {t[3]}")
        A(f"v_lshlrev_b32 {t[3]}, 14, {t[3]}")
        A(f"v_and_b32 {t[4]}, 3, {vN}")
        A(f"v_lshl_add_u32 {t[3]}, {t[4]}, 4, {t[3]}")
        A(f"s_lshl_b32 {sT1}, {sW}, 16")
        A(f"s_lshl_b32 {sT2}, {sE}, 13")
        A(f"s_add_u32 {sT1}, {sT1}, {sT2}")
        A(f"s_lshl_b32 {sT0}, {sT0}, 6")
        A(f"s_add_u32 {sT1}, {sT1}, {sT0}")
        A(f"s_add_u32 {sT1}, {sT1}, {WS_C}")
        A(f"v_add_u32 {vCst[0]}, {sT1}, {t[3]}")
        A(f"v_add_u32 {vCst[1]}, {1 << 20}, {vCst[0]}")
        sNeg = s("neg")
        A(f"s_mul_i32 {sNeg}, {sE}, 0x80008000")
        vZw, vZr, Bq, Bf = v("Zw"), v("Zr", 8), v("Bq", 8), C1[0:16]
        A(f"s_cmp_lg_u32 {sSpec}, 0")
        A("s_cbranch_scc1 L_zaddr")
        A.cond_begin()
        A(f"s_and_b32 {sT2}, {sW}, 1")
        A(f"s_lshl_b32 {sT2}, {sT2}, 4")
        A(f"v_add_u32 {t[0]}, {sT2}, {vN}")
        A(f"v_lshlrev_b32 {t[1]}, 10, {vG}")
        A(f"v_lshl_add_u32 {vZw}, {t[0]}, 3, {t[1]}")
        A(f"v_lshl_add_u32 {t[0]}, {t[0]}, 1, {sE}")
        A(f"v_lshl_add_u32 {t[0]}, {vG}, 8, {t[0]}")
        for k in range(8):
            A(f"v_sub_u32 {t[1]}, {2048 - 64 * (16 * (k // 4) + k % 4)}, {t[0]}")
            A(f"v_and_b32 {t[1]}, 2046, {t[1]}")
            A(f"v_lshlrev_b32 {vZr[k]}, 2, {t[1]}")
        A.cond_end()
        A.label("L_zaddr")

        Z = v("Z", 16)
        A.drain(vm=False)
        self.stamp()
        A.label("L_B")
        for kap in range(4):
            A(f"global_load_dwordx4 {Z[4 * kap:4 * kap + 4]}, {vBl}, {WS} offset:{1024 * kap} sc1")
        A.drain(lgkm=False)
        self.sentinel_check(A, Z, t[0])
        self.retry("B", "L_B")
        self.stamp()
        for tt in range(2):
            A(f"global_load_dwordx4 {Wq[4 * tt:4 * tt + 4]}, {vWl}, {WS} offset:{-2048 + 4096 * tt} sc1")
        A(f"s_cmp_lg_u32 {sSpec}, 0")
        A("s_cbranch_scc1 L_bq")
        A.cond_begin()
        for tt in range(2):
            A(f"global_load_dwordx4 {Bq[4 * tt:4 * tt + 4]}, {vWl}, {WS} offset:{-2048 + 32 + 4096 * tt} sc1")
        A.cond_end()
        A.label("L_bq")
        M = Asm()
        for kap in range(4):
            for ah in range(2):
                for part in range(2):
                    d = D[8 * part + 4 * ah:8 * part + 4 * ah + 4]
                    o = (ah * 2 + kap % 2) * 8 + 4 * part
                    M(f"v_mfma_f32_16x16x32_bf16 {d}, {Z[4 * kap:4 * kap + 4]}, {C1[o:o + 4]}, {d if kap else 0}")
        F = Asm()
        for k in range(8, 16):
            F(f"v_xor_b32 {Z[k]}, {sNeg}, {Z[k]}")
        self.issue(F, "c")
        A.extend(interleave(M, F, per=2))
        if self.opt["actclr_at"] == "P2":
            act_clear()
        self.cmul(A, D[16:24], D[24:32], D[0:8], D[8:16], tfc, tfs, lambda k: k // 2)
        self.packc(A, t[0:8], D[16:24], D[24:32])
        for ah in range(2):
            for c in range(2):
                A(f"ds_write_b64 {vX1w}, {pr(t, 4 * ah + 2 * c)} offset:{L_X1 + 4096 * c + 2048 * ah}")
        self.barrier()
        for kap in range(2):
            A(f"ds_read_b128 {Z[4 * kap:4 * kap + 4]}, {vXr} offset:{L_X1 + 1024 * kap}")

        def stage(data, data_is_a):
            Mx = Asm()
            for kap in range(2):
                for tt in range(2):
                    for part in range(2):
                        d = D[8 * part + 4 * tt:8 * part + 4 * tt + 4]
                        o = (tt * 2 + kap) * 8 + 4 * part
                        a, b = (data[4 * kap:4 * kap + 4], C2[o:o + 4]) if data_is_a else (C2[o:o + 4], data[4 * kap:4 * kap + 4])
                        Mx(f"v_mfma_f32_16x16x32_bf16 {d}, {a}, {b}, {d if kap else 0}")
            return Mx
        F = Asm()
        for k in range(8):
            F(f"v_lshlrev_b32 {Wf[k]}, 16, {Wq[k]}")
            F(f"v_and_b32 {Wf[8 + k]}, 0xffff0000, {Wq[k]}")
        A.extend(interleave(stage(Z, False), F, per=2))
        for k in range(4):
            A(f"v_pk_mul_f32 {pr(D, 16 + 2 * k)}, {pr(D, 2 * k)}, {pr(Wf, 2 * k)}")
            A(f"v_pk_mul_f32 {pr(D, 24 + 2 * k)}, {pr(D, 8 + 2 * k)}, {pr(Wf, 2 * k)} neg_lo:[0,1] neg_hi:[0,1]")
        for k in range(4):
            A(f"v_pk_fma_f32 {pr(D, 16 + 2 * k)}, {pr(D, 8 + 2 * k)}, {pr(Wf, 8 + 2 * k)}, {pr(D, 16 + 2 * k)} neg_lo:[0,1,0] neg_hi:[0,1,0]")
            A(f"v_pk_fma_f32 {pr(D, 24 + 2 * k)}, {pr(D, 2 * k)}, {pr(Wf, 8 + 2 * k)}, {pr(D, 24 + 2 * k)} neg_lo:[0,1,0] neg_hi:[0,1,0]")
        A(f"s_and_b32 {sT0}, {J}, 127")
        A("s_cbranch_scc1 L_nospec")
        A.cond_begin()
        A(f"s_cmp_lg_u32 {sSpec}, 0")
        A("s_cbranch_scc1 L_spec_w")
        A.cond_begin()
        for k in range(8):
            A(f"v_add_u32 {t[8]}, {L_ZREV + 256 * (16 * (k // 4) + k % 4)}, {vZw}")
            A(f"ds_write2_b32 {t[8]}, {D[k]}, {D[8 + k]} offset0:0 offset1:1")
        for k in range(8):
            A(f"v_lshlrev_b32 {Bf[k]}, 16, {Bq[k]}")
            A(f"v_and_b32 {Bf[8 + k]}, 0xffff0000, {Bq[k]}")
        A.cond_end()
        A.label("L_spec_w")
        self.barrier()
        A(f"s_cmp_lg_u32 {sSpec}, 0")
        A("s_cbranch_scc1 L_spec_r")
        A.cond_begin()
        for k in range(8):
            A(f"ds_read_b64 {pr(t, 2 * k)}, {vZr[k]} offset:{L_ZREV}")
        for k in range(8):
            A(f"v_fmac_f32 {D[16 + k]}, {Bf[k]}, {t[2 * k]}")
            A(f"v_fmac_f32 {D[24 + k]}, {Bf[k]}, {t[2 * k + 1]}")
            A(f"v_fmac_f32 {D[16 + k]}, {Bf[8 + k]}, {t[2 * k + 1]}")
            A(f"v_fma_f32 {D[24 + k]}, -{Bf[8 + k]}, {t[2 * k]}, {D[24 + k]}")
        A.cond_end()
        A.label("L_spec_r")
        A.cond_end()
        A.label("L_nospec")
        self.packc(A, Z[0:8], D[16:24], D[24:32])
        A.extend(stage(Z, True))
        self.cmul(A, D[16:24], D[24:32], D[0:8], D[8:16], tic, tis, lambda k: k)
        self.packc(A, t[0:8], D[16:24], D[24:32])
        for tt in range(2):
            A(f"ds_write_b128 {vX2w}, {t[4 * tt:4 * tt + 4]} offset:{L_X2 + 4096 * tt}")
        self.barrier()
        for kap in range(2):
            A(f"ds_read_b128 {Z[4 * kap:4 * kap + 4]}, {vXr} offset:{L_X2 + 1024 * kap}")
        A.extend(stage(Z, False))
        self.packc(A, t[0:8], D[0:8], D[8:16])
        for tt in range(2):
            A(f"global_store_dwordx4 {vCst[tt]}, {t[4 * tt:4 * tt + 4]}, {WS} sc1")
        self.stamp()
        self.V.release("C1", "C2", "tfc", "tfs", "tic", "tis", "Bl", "Wl", "X1w", "Xr", "X2w", "Cst", "Wq", "Wf", "Zw", "Zr", "Bq")
        self.S.release("spec", "neg")

        if self.opt["actclr_at"] == "WC":
            act_clear()
        bias = v("bias", 12)
        vGm, vXl, xq, xf, gm = v("Gm", 2), v("Xl"), v("xq", 8), v("xf", 16), v("gm", 16)
        A(f"v_add_u32 {vGm[0]}, {WS_M2 + 2048}, {vT16}")
        A(f"v_add_u32 {vGm[1]}, {WS_M2 + 2048 + 8192}, {vT16}")
        vLam = v("lam")
        A(f"v_lshlrev_b32 {vLam}, 5, {vN}")
        A(f"v_lshl_add_u32 {vLam}, {vG}, 3, {vLam}")
        A(f"v_add_u32 {vXl}, {sRow}, {vLam}")
        for r in range(2):
            for tt in range(2):
                A(f"global_load_dwordx2 {pr(xq, 4 * r + 2 * tt)}, {vXl}, {X} offset:{1024 * r + 512 * tt}")
        bq = v("bq", 6)
        A(f"v_lshl_add_u32 {t[0]}, {vG}, 3, {sCol}")
        for tile in range(3):
            A(f"buffer_load_dwordx2 {pr(bq, 2 * tile)}, {t[0]}, {SB1}, 0 offen offset:{32 * tile}")
        self.collect(A, "b")
        A.drain(vm=False)
        self.issue(A, "d")
        self.collect(A, "c")
        RA, RB = v("RA", 32), v("RB", 8)
        vSg, vMk, vPi = v("sg"), v("mk"), v("pi")
        A(f"v_lshrrev_b32 {t[13]}, 1, {vG}")
        A(f"v_lshlrev_b32 {vSg}, 31, {t[13]}")
        A(f"v_add_u32 {vMk}, -1, {t[13]}")
        A(f"v_and_b32 {vPi}, 1, {vN}")
        A(f"v_lshlrev_b32 {vPi}, 31, {vPi}")
        A(f"v_or_b32 {vPi}, 0.5, {vPi}")
        A(f"v_cndmask_b32 {vPi}, 0, {vPi}, {sMG0}")
        k1 = v("k1")
        A(f"v_mov_b32 {k1}, 1.0")
        A(f"v_cndmask_b32 {k1}, {k1}, 0.5, {sMG0}")
        chi, offs = v("chi"), v("offs")
        A(f"s_lshr_b32 {sT0}, {sRow}, 15")
        A(f"v_cvt_f32_u32 {chi}, {sT0}")
        A(f"v_mul_f32 {chi}, {f32(1 / 64)}, {chi}")
        A(f"v_cvt_f32_u32 {offs}, {t[13]}")
        A(f"v_mul_f32 {offs}, {offs}, {fN}")
        A(f"v_mul_f32 {offs}, {f32(-15 / 32)}, {offs}")
        A(f"v_mul_f32 {st}, {f32(1 / 16)}, {fN}")
        for e in range(2):
            def g0(d, e=e):
                A(f"v_mul_f32 {d}, {fG4}, {st}")
                if e:
                    A(f"v_xor_b32 {t[14]}, {chi}, {vSg}")
                    A(f"v_add_f32 {d}, {d}, {t[14]}")
            self.angles(A, ang, g0, st)
            self.sincos(A, cs, sn, ang)
            for i in range(4):
                A(f"v_cvt_pk_bf16_f32 {RA[16 * e + i]}, {cs[i]}, {sn[i]}")
                A(f"v_cvt_pk_bf16_f32 {RA[16 * e + 4 + i]}, -{sn[i]}, {cs[i]}")
                A(f"v_xor_b32 {RA[16 * e + i]}, {RA[16 * e + i]}, {vSg}")
                A(f"v_xor_b32 {RA[16 * e + 4 + i]}, {RA[16 * e + 4 + i]}, {vSg}")

            def s0(d, e=e):
                A(f"v_fma_f32 {d}, {fG4}, {st}, {offs}")
                if e:
                    A(f"v_add_f32 {d}, {d}, {chi}")
            self.angles(A, ang, s0, st)
            self.sincos(A, cs, sn, ang)
            A(f"v_mul_f32 {t[14]}, {k1}, {cs[0]}")
            A(f"v_mul_f32 {t[15]}, {k1}, {sn[0]}")
            A(f"v_fma_f32 {t[15]}, -{vPi}, {cs[0]}, {t[15]}")
            A(f"v_fma_f32 {cs[0]}, {vPi}, {sn[0]}, {t[14]}")
            A(f"v_mov_b32 {sn[0]}, {t[15]}")
            for i in range(4):
                A(f"v_cvt_pk_bf16_f32 {RA[16 * e + 12 + i]}, {cs[i]}, {sn[i]}")
                A(f"v_and_b32 {RA[16 * e + 8 + i]}, {RA[16 * e + 12 + i]}, {vMk}")
                A(f"v_xor_b32 {RA[16 * e + 12 + i]}, {RA[16 * e + 12 + i]}, {RA[16 * e + 8 + i]}")
        for tt in range(2):
            A(f"v_add_f32 {t[13]}, {f32(16.0 * tt)}, {fN}")
            A(f"v_mul_f32 {st}, {f32(1 / 32)}, {t[13]}")
            self.angles(A, ang, lambda d: A(f"v_mul_f32 {d}, {fG4}, {st}"), st)
            self.sincos(A, cs, sn, ang)
            A(f"v_fmac_f32 {sn[0]}, 2.0, {vPi}")
            for i in range(4):
                A(f"v_cvt_pk_bf16_f32 {RB[4 * tt + i]}, {cs[i]}, {sn[i]}")
        self.V.release("sg", "mk", "pi", "k1", "chi", "offs", "fN", "fG4")

        A.label("L_M")
        for k in range(4):
            A(f"global_load_dwordx4 {gm[4 * k:4 * k + 4]}, {vGm[k // 2]}, {WS} offset:{-2048 + 4096 * (k % 2)} sc1")
        self.unpack(A, xf, xq)
        self.unpack(A, bias, bq)
        A.drain(lgkm=False)
        A(f"v_sad_u32 {t[0]}, {gm[1]}, {sTag}, 0")
        for k in range(3, 16, 2):
            A(f"v_sad_u32 {t[0]}, {gm[k]}, {sTag}, {t[0]}")
        A(f"v_cmp_ne_u32 vcc, 0, {t[0]}")
        self.retry("M", "L_M")
        sMul = s("mul", 4)
        A(f"s_cmp_ge_u32 {sW}, 2")
        A(f"s_mov_b32 {sT0}, {f32(LOG2E)}")
        A(f"s_cselect_b32 {sMul[0]}, {sT0}, {f32(2.0 ** -19)}")
        A(f"s_mov_b32 {sMul[1]}, 0")
        A(f"s_cselect_b32 {sMul[2]}, {f32(LN2)}, {sT0}")
        A(f"s_cselect_b32 {sMul[3]}, 0, {sT0}")
        for k in range(4):
            self.unpack(A, t[4 * k:4 * k + 2], gm[4 * k])
            self.unpack(A, t[4 * k + 2:4 * k + 4], gm[4 * k + 2])
        for k in range(4):
            A(f"v_pk_add_f32 {pr(t, 2 * k)}, {pr(t, 2 * k)}, {pr(t, 8 + 2 * k)}")
        for k in range(4):
            m = pr(sMul, 2 * (k // 2))
            A(f"v_pk_fma_f32 {pr(t, 2 * k)}, {pr(t, 2 * k)}, {m}, {m} op_sel:[0,0,1] op_sel_hi:[1,0,1]")
        vMf = v("Mf")
        A(f"v_add_u32 {vMf}, {L_M2F}, {vT16}")
        for k in range(2):
            A(f"ds_write_b128 {vMf}, {t[4 * k:4 * k + 4]} offset:{4096 * k}")
        A(f"s_mov_b32 {sMul[0]}, {f32(LOG2E)}")
        for k in range(6):
            A(f"v_pk_mul_f32 {pr(bias, 2 * k)}, {pr(bias, 2 * k)}, {pr(sMul, 0)} op_sel_hi:[1,0]")
        self.S.release("mul")
        self.V.release("Gm", "Xl", "xq", "bq", "Mf")
        vCl, vMr, vDst = v("Cl", 2), v("Mr"), v("Dst")
        A(f"s_and_b32 {sT0}, {J}, 127")
        A(f"s_lshl_b32 {sT0}, {sT0}, 14")
        A(f"s_add_u32 {sT0}, {sT0}, {WS_C + 2048}")
        A(f"v_add_u32 {vCl[0]}, {sT0}, {vT16}")
        A(f"v_add_u32 {vCl[1]}, 8192, {vCl[0]}")
        A(f"v_lshlrev_b32 {vMr}, 1, {vLam}")
        A(f"v_add_u32 {vMr}, {L_M2F}, {vMr}")
        sGb = s("gbase")
        A(f"s_lshl_b32 {sGb}, {sG}, 16")
        A(f"s_lshl_b32 {sT0}, {sJJ}, 13")
        A(f"s_lshl_b32 {sT1}, {sW}, 11")
        A(f"s_add_u32 {sT0}, {sT0}, {sT1}")
        A(f"s_add_u32 {sT0}, {sT0}, {sGb}")
        A(f"s_add_u32 {sT0}, {sT0}, {WS_D}")
        A(f"v_add_u32 {vDst}, {sT0}, {v16L}")

        self.barrier()
        self.stamp()
        A.label("L_C")
        for k in range(4):
            A(f"global_load_dwordx4 {Z[4 * k:4 * k + 4]}, {vCl[k // 2]}, {WS} offset:{-2048 + 4096 * (k % 2)} sc1")
        A.drain(lgkm=False)
        self.sentinel_check(A, Z, t[0])
        self.retry("C", "L_C")
        self.stamp()
        for k in range(4):
            e, u = k // 2, k % 2
            for h in range(2):
                o = 36 * e + 2 * u + 18 * h
                A(f"ds_write2st64_b32 {vPL}, {Z[4 * k + 2 * h]}, {Z[4 * k + 2 * h + 1]} offset0:{o} offset1:{o + 9}")
        self.issue(A, "e")
        self.barrier()
        for r in range(2):
            for e in range(2):
                A(f"ds_read_b128 {Z[8 * r + 4 * e:8 * r + 4 * e + 4]}, {vPlW} offset:{L_PL + 9216 * e + 1088 * r}")
        md = v("md", 24)
        F = Asm()
        for a in range(3):
            for tt in range(2):
                F(f"ds_read_b128 {md[8 * a + 4 * tt:8 * a + 4 * tt + 4]}, {vMr} offset:{2048 * a + 1024 * tt}")
        M = Asm()
        for r in range(2):
            for e in range(2):
                for k in range(4):
                    d = D[8 * k + 4 * r:8 * k + 4 * r + 4]
                    M(f"v_mfma_f32_16x16x32_bf16 {d}, {Z[8 * r + 4 * e:8 * r + 4 * e + 4]}, {RA[16 * e + 4 * k:16 * e + 4 * k + 4]}, {d if e else 0}")
        A.extend(interleave(M, F, per=1, start=8))
        for r in range(2):
            A(f"v_cndmask_b32 {D[4 * r]}, {D[4 * r]}, {D[16 + 4 * r]}, {sMG0}")
            A(f"v_cndmask_b32 {D[8 + 4 * r]}, {D[8 + 4 * r]}, {D[24 + 4 * r]}, {sMG0}")
        self.cmul(A, D[16:24], D[24:32], D[0:8], D[8:16], twc, tws, lambda k: k % 2)
        self.packc(A, t[0:8], D[16:24], D[24:32])
        for r in range(2):
            for tt in range(2):
                A(f"v_mfma_f32_16x16x32_bf16 {D[8 * r + 4 * tt:8 * r + 4 * tt + 4]}, {t[4 * r:4 * r + 4]}, {RB[4 * tt:4 * tt + 4]}, 0")
        for k in range(8):
            A(f"v_pk_fma_f32 {pr(xf, 2 * k)}, {pr(D, 2 * k)}, {pr(md, 2 * (k % 4))}, {pr(xf, 2 * k)}")
        F = Asm()
        for k in range(8):
            F(f"v_cvt_pk_bf16_f32 {gm[k]}, {xf[2 * k]}, {xf[2 * k + 1]}")
        self.row_stats(A, xf[0:8], xf[8:16], t[0:8], lnp, fill=F)
        for r in range(2):
            for k in range(4):
                A(f"v_pk_fma_f32 {pr(xf, 8 * r + 2 * k)}, {pr(xf, 8 * r + 2 * k)}, {pr(lnp, 2 * r)}, {pr(lnp, 2 * r)} op_sel:[0,0,1] op_sel_hi:[1,0,1]")
            for k in range(4):
                A(f"v_pk_fma_f32 {pr(xf, 8 * r + 2 * k)}, {pr(xf, 8 * r + 2 * k)}, {pr(md, 16 + 2 * k)}, {pr(md, 8 + 2 * k)}")
            for k in range(4):
                A(f"v_cvt_pk_bf16_f32 {t[4 * r + k]}, {xf[8 * r + 2 * k]}, {xf[8 * r + 2 * k + 1]}")
            A(f"global_store_dwordx4 {vDst}, {t[4 * r:4 * r + 4]}, {WS} offset:{1024 * r} sc1")
        self.stamp()

        A(f"s_lshl_b32 {sT0}, {sW}, 11")
        A(f"s_add_u32 {sT0}, {sT0}, {L_X1T}")
        A(f"v_add_u32 {t[8]}, {sT0}, {vLam}")
        A(f"v_add_u32 {t[9]}, {sT0}, {v16L}")
        for r in range(2):
            for tt in range(2):
                A(f"ds_write_b64 {t[8]}, {pr(gm, 4 * r + 2 * tt)} offset:{1024 * r + 512 * tt}", "x1t")
        A.wait_tag("x1t")
        for r in range(2):
            A(f"ds_read_b128 {gm[8 + 4 * r:12 + 4 * r]}, {t[9]} offset:{1024 * r}")
        A(f"v_add_u32 {vDst}, {WS_X1 - WS_D}, {vDst}")
        for r in range(2):
            A(f"global_store_dwordx4 {vDst}, {gm[8 + 4 * r:12 + 4 * r]}, {WS} offset:{1024 * r} sc1")
        A.drain(vm=False)
        self.V.release("RA", "RB", "twc", "tws", "D", "Z", "md", "xf", "lnp", "Cl", "Mr", "Dst", "PL", "plW", "lam", "ones", "clr", "t16", "eps", "gm")
        keep = {n: r for n, r in self.V.used.items()}
        assert all(b + n <= 136 for (b, n) in keep.values()), keep
        self.V.alloc("w1v", 120, at=136)
        self.collect(A, "d")
        self.collect(A, "e")
        self.V.release("W1o", "T1")
        vH, vAst, hb = v("H", 1), v("Ast", 2), v("hb", 16)
        A(f"v_mul_u32_u24 {vH}, 1040, {vN}")
        A(f"v_lshl_add_u32 {vH}, {vG}, 8, {vH}")
        sAb, sDs, sDm = s("abase"), s("dsrc"), s("dm0")
        A(f"s_lshl_b32 {sT0}, {sG}, 3")
        A(f"s_add_u32 {sT1}, {sT0}, {sJJ}")
        A(f"s_mul_i32 {sT1}, {sT1}, 24576")
        A(f"s_add_u32 {sT1}, {sT1}, {WS_ACT}")
        A(f"s_lshl_b32 {sT2}, {sW}, 10")
        A(f"s_add_u32 {sT2}, {sT2}, {sT1}")
        A(f"v_add_u32 {vAst[0]}, {sT2}, {v16L}")
        A(f"s_lshl_b32 {sT2}, {sW}, 9")
        A(f"s_add_u32 {sT2}, {sT2}, {sT1}")
        A(f"s_add_u32 {sT2}, {sT2}, 4096")
        A(f"v_lshl_add_u32 {vAst[1]}, {vL}, 3, {sT2}")
        A(f"s_lshl_b32 {sT1}, {sW}, 1")
        A(f"s_add_u32 {sT0}, {sT0}, {sT1}")
        A(f"s_mul_i32 {sAb}, {sT0}, 24576")
        A(f"s_add_u32 {sAb}, {sAb}, {WS_ACT}")
        A(f"s_lshl_b32 {sDs}, {sW}, 14")
        A(f"s_add_u32 {sDs}, {sDs}, {sGb}")
        A(f"s_add_u32 {sDs}, {sDs}, {WS_D}")
        A(f"s_mul_i32 {sDm}, {sW}, 16640")
        vHr = v("Hr")
        A(f"v_add_u32 {vHr}, {sDm}, {v16L}")
        self.barrier()

        self.stamp()
        A.label("L_D")
        for r in range(16):
            A(f"s_add_u32 m0, {sDm}, {L_H2 + 1040 * r}")
            A(f"s_add_u32 {sT0}, {sDs}, {1024 * r}")
            A(f"buffer_load_dwordx4 {v16L}, {SWS}, {sT0} offen sc1 lds")
        A.drain()
        A(f"v_mov_b32 {t[0]}, 0")
        for r0 in range(0, 16, 4):
            for r in range(4):
                A(f"ds_read_b128 {hb[4 * r:4 * r + 4]}, {vHr} offset:{L_H2 + 1040 * (r0 + r)}")
            for k in range(8):
                A(f"v_max3_u32 {t[0]}, {t[0]}, {hb[2 * k]}, {hb[2 * k + 1]}")
        A(f"v_cmp_eq_u32 vcc, -1, {t[0]}")
        self.retry("D", "L_D")
        A("s_barrier")
        self.stamp()

        acc = [v("accA", 12), v("accB", 12)]
        sR2 = s("rsq2")
        A(f"s_mov_b32 {sR2}, {f32(math.sqrt(0.5))}")

        def g1_mfma(q):
            Mx = Asm()
            if q == 0:
                for kap in range(3):
                    Mx(f"ds_read_b128 {hb[4 * kap:4 * kap + 4]}, {vH} offset:{L_H2 + 16 * kap}")
            for kap in range(16):
                nq, nk = (q, kap + 3) if kap + 3 < 16 else (q + 1, kap + 3 - 16)
                cur = hb[4 * (kap % 4):4 * (kap % 4) + 4]
                for tile in range(3):
                    d = acc[q % 2][4 * tile:4 * tile + 4]
                    Mx(f"v_mfma_f32_16x16x32_bf16 {d}, {self.w1reg(kap, tile)}, {cur}, {d if kap else bias[4 * tile:4 * tile + 4]}")
                    if tile == 0 and nq < 4:
                        Mx(f"ds_read_b128 {hb[4 * (nk % 4):4 * (nk % 4) + 4]}, {vH} offset:{L_H2 + 16640 * nq + 16 * nk}")
            return Mx

        def mish(q):
            Fx = Asm()
            a = acc[q % 2]
            for g0 in range(0, 12, 4):
                u = t[0:4]
                for k in range(4):
                    Fx(f"v_exp_f32 {u[k]}, {a[g0 + k]}")
                for k in range(4):
                    Fx(f"v_fma_f32 {u[k]}, {u[k]}, {sR2}, {sR2}")
                for k in range(4):
                    Fx(f"v_fma_f32 {u[k]}, {u[k]}, {u[k]}, 0.5")
                for k in range(4):
                    Fx(f"v_rcp_f32 {u[k]}, {u[k]}")
                for k in range(4):
                    Fx(f"v_fma_f32 {u[k]}, -{a[g0 + k]}, {u[k]}, {a[g0 + k]}")
                o = 8 + g0 // 2
                Fx(f"v_cvt_pk_bf16_f32 {t[o]}, {u[0]}, {u[1]}")
                Fx(f"v_cvt_pk_bf16_f32 {t[o + 1]}, {u[2]}, {u[3]}")
                if g0 == 4:
                    Fx(f"global_store_dwordx4 {vAst[0]}, {t[8:12]}, {WS} sc1")
            Fx(f"global_store_dwordx2 {vAst[1]}, {t[12:14]}, {WS} sc1")
            if q < 3:
                Fx(f"v_add_u32 {vAst[0]}, 6144, {vAst[0]}")
                Fx(f"v_add_u32 {vAst[1]}, 6144, {vAst[1]}")
            return Fx
        F = Asm()
        self.issue(F, "f")
        A.extend(interleave(g1_mfma(0), F, per=1, start=2))
        for q in range(1, 4):
            A.extend(interleave(g1_mfma(q), mish(q - 1), per=2, start=3))
        A.extend(mish(3))
        self.stamp()
        self.V.release("accA", "accB", "hb", "H", "Hr", "Ast", "bias", "w1v", "W2o")
        keep = {n: r for n, r in self.V.used.items()}
        assert all(b + n <= 72 for (b, n) in keep.values()), keep

        act = self.V.alloc("act", 176, at=80)
        v8L = v("8L")
        A(f"v_lshlrev_b32 {v8L}, 3, {vL}")
        A(f"v_add_u32 {v8L}, 4096, {v8L}")

        def act_loads(Ax, q):
            for hi in range(2):
                Ax(f"s_add_u32 {sT0}, {sAb}, {24576 * hi + 6144 * q}")
                for w in range(4):
                    o = 44 * q + 16 * hi + 4 * w
                    Ax(f"buffer_load_dwordx4 {act[o:o + 4]}, {v16L}, {SWS}, {sT0} offen offset:{1024 * w} sc1")
                for w in range(3):
                    o = 44 * q + 32 + 2 * (3 * hi + w)
                    Ax(f"buffer_load_dwordx2 {act[o:o + 2]}, {v8L}, {SWS}, {sT0} offen offset:{512 * w} sc1")
        act_loads(A, 0)
        act_loads(A, 1)
        self.collect(A, "f")
        vRw, vRr, vX1l, vOut, vGb = v("Rw", 3, align=1), v("Rr"), v("X1l", 2), v("Out", 2), v("Gb")
        for dl in range(1, 4):
            A(f"s_add_u32 {sT0}, {sW}, {dl}")
            A(f"s_and_b32 {sT0}, {sT0}, 3")
            A(f"s_mul_i32 {sT0}, {sT0}, 12288")
            A(f"s_add_u32 {sT0}, {sT0}, {L_RED + 1024 * (dl - 1)}")
            A(f"v_add_u32 {vRw[dl - 1]}, {sT0}, {v16L}")
        A(f"s_mul_i32 {sT0}, {sW}, 12288")
        A(f"v_add_u32 {vRr}, {sT0}, {v16L}")
        A(f"s_lshl_b32 {sT1}, {sJJ}, 7")
        A(f"s_lshl_b32 {sT2}, {sW}, 5")
        A(f"s_add_u32 {sT1}, {sT1}, {sT2}")
        A(f"s_add_u32 {sT0}, {sT1}, {sGb}")
        A(f"s_add_u32 {sT0}, {sT0}, {WS_X1}")
        A(f"v_lshlrev_b32 {t[0]}, 10, {vN}")
        A(f"v_lshl_add_u32 {t[0]}, {vG}, 3, {t[0]}")
        A(f"v_add_u32 {vX1l[0]}, {sT0}, {t[0]}")
        A(f"s_lshl_b32 {sT0}, {sT1}, 1")
        A(f"s_add_u32 {sT0}, {sT0}, {L_M2F + 6144}")
        A(f"v_lshl_add_u32 {vGb}, {vG}, 4, {sT0}")
        A(f"v_lshrrev_b32 {t[0]}, 3, {vN}")
        A(f"v_lshlrev_b32 {t[0]}, 8, {t[0]}")
        A(f"v_bfe_u32 {t[1]}, {vN}, 1, 2")
        A(f"v_lshl_add_u32 {t[0]}, {t[1]}, 5, {t[0]}")
        A(f"v_and_b32 {t[1]}, 1, {vN}")
        A(f"v_add_u32 {t[0]}, {t[0]}, {t[1]}")
        A(f"v_and_b32 {t[1]}, 1, {vG}")
        A(f"v_lshl_add_u32 {t[0]}, {t[1]}, 9, {t[0]}")
        A(f"v_lshlrev_b32 {t[0]}, 10, {t[0]}")
        A(f"v_lshrrev_b32 {t[1]}, 1, {vG}")
        A(f"v_lshl_add_u32 {t[0]}, {t[1]}, 4, {t[0]}")
        A(f"s_lshr_b32 {sT0}, {sG}, 4")
        A(f"s_lshl_b32 {sT0}, {sT0}, 17")
        A(f"s_and_b32 {sT2}, {sG}, 15")
        A(f"s_lshl_b32 {sT2}, {sT2}, 11")
        A(f"s_add_u32 {sT0}, {sT0}, {sT2}")
        A(f"s_add_u32 {sT0}, {sT0}, {sT1}")
        A(f"v_add_u32 {vOut[0]}, {sT0}, {t[0]}")
        A(f"v_add_u32 {vOut[1]}, {1 << 20}, {vOut[0]}")
        gb, x1q, sum_ = v("gb", 4), v("x1q", 8), v("sum", 16)
        A(f"ds_read_b128 {gb}, {vGb}")
        acc2 = Reg("a", 176, 64)
        order = [0, 1, 2, 3, 8, 4, 5, 6, 7, 9, 10]
        for q in range(4):
            A.label(f"L_G{q}")
            Mx, Fx = Asm(), Asm()
            for n_, phi in enumerate(order):
                fr = act[44 * q + 4 * phi:44 * q + 4 * phi + 4]
                for dl in range(4):
                    d = acc2[16 * q + 4 * dl:16 * q + 4 * dl + 4]
                    Mx(f"v_mfma_f32_16x16x32_bf16 {d}, {self.w2reg(phi, dl)}, {fr}, {d if n_ else 0}")
                    if dl == 0:
                        Mx(f"v_max3_u32 {t[0]}, {fr[0]}, {fr[1]}, {t[0] if n_ else fr[2]}")
                    if dl == 1:
                        Mx(f"v_max3_u32 {t[0]}, {fr[2]}, {fr[3]}, {t[0]}")
            Mx(f"v_cmp_eq_u32 vcc, -1, {t[0]}")
            A.extend(Mx)
            R = Asm()
            act_loads(R, q)
            self.retry(f"G{q}", f"L_G{q}", R)
            if q == 0:
                act_loads(A, 2)
                act_loads(A, 3)
                A("s_barrier")
                for qq in range(4):
                    if qq == 2:
                        A(f"v_add_u32 {vX1l[0]}, 32768, {vX1l[0]}")
                    if qq % 2 == 0:
                        A(f"v_add_u32 {vX1l[1]}, 16384, {vX1l[0]}")
                    A(f"global_load_dwordx2 {pr(x1q, 2 * qq)}, {vX1l[qq % 2]}, {WS} sc1")
            for dl in range(1, 4):
                A(f"ds_write_b128 {vRw[dl - 1]}, {acc2[16 * q + 4 * dl:16 * q + 4 * dl + 4]} offset:{3072 * q}")
            for i in range(4):
                A(f"v_accvgpr_read_b32 {sum_[4 * q + i]}, {acc2[16 * q + i]}")
        self.stamp()
        self.barrier()
        red = act[0:48]
        for q in range(4):
            for k in range(3):
                A(f"ds_read_b128 {red[12 * q + 4 * k:12 * q + 4 * k + 4]}, {vRr} offset:{L_RED + 3072 * q + 1024 * k}")
        xo = act[48:64]
        self.unpack(A, xo, x1q)
        for q in range(4):
            for k in range(3):
                for h in range(2):
                    A(f"v_pk_add_f32 {pr(sum_, 4 * q + 2 * h)}, {pr(sum_, 4 * q + 2 * h)}, {pr(red, 12 * q + 4 * k + 2 * h)}")
            for h in range(2):
                A(f"v_pk_fma_f32 {pr(xo, 4 * q + 2 * h)}, {pr(sum_, 4 * q + 2 * h)}, {pr(gb, 2 * h)}, {pr(xo, 4 * q + 2 * h)}")
            for h in range(2):
                A(f"v_cvt_pk_bf16_f32 {t[2 * q + h]}, {xo[4 * q + 2 * h]}, {xo[4 * q + 2 * h + 1]}")
            if q % 2:
                b = 2 * (q - 1)
                A(f"v_permlane16_swap_b32 {t[b]}, {t[b + 2]}")
                A(f"v_permlane16_swap_b32 {t[b + 1]}, {t[b + 3]}")
                A(f"global_store_dwordx4 {vOut[q // 2]}, {t[b:b + 4]}, {OUT}")
        if self.stamps:
            A.drain()
            self.stamp()
            A.drain()
            for k in (self.nstamp - 2, self.nstamp - 1):
                A(f"v_writelane_b32 {self.vStamp}, s{(0, 10, 24)[k % 3]}, {k}")
            A(f"v_writelane_b32 {self.vStamp}, {self.sBud}, 31")
            A(f"s_lshl_b32 {sT0}, {J}, 2")
            A(f"s_add_u32 {sT0}, {sT0}, {sW}")
            A(f"s_lshl_b32 {sT0}, {sT0}, 7")
            A(f"s_add_u32 {sT0}, {sT0}, {WS_STAMP}")
            A(f"v_lshl_add_u32 {t[0]}, {vL}, 2, {sT0}")
            A("s_mov_b32 exec_hi, 0")
            A(f"global_store_dword {t[0]}, {self.vStamp}, {WS}")
        A.label("L_end")
        A("s_endpgm")

    def vconst(self, A, reg, val):
        A(f"v_mov_b32 {reg}, {val}")
        return reg

    def cplx_const(self, A, dst, o, t, fG4, kap):
        ang, cs, sn, st = t[0:4], t[4:8], t[8:12], t[12]

        def b0(d):
            if kap == 0:
                A(f"v_mul_f32 {d}, {fG4}, {st}")
            else:
                A(f"v_add_f32 {d}, {f32(16.0)}, {fG4}")
                A(f"v_mul_f32 {d}, {d}, {st}")
        self.angles(A, ang, b0, st)
        self.sincos(A, cs, sn, ang)
        for i in range(4):
            A(f"v_cvt_pk_bf16_f32 {dst[o + i]}, {cs[i]}, {sn[i]}")
            A(f"v_cvt_pk_bf16_f32 {dst[o + 4 + i]}, -{sn[i]}, {cs[i]}")

    def text(self):
        self.build()
        body, st = finalize(self.A)
        for T in self.tail:
            body += finalize(T)[0]
        head = open("adaLN_cond__spectral_gfnet__dense_activation_mish__prompt.s.ref").read().split("\n")
        L = [l for l in head[:head.index(next(h for h in head if "@launch" in h))] if l.startswith(";")]
        L.append(f"; @launch grid=(256,1,1) block=(256,1,1) lds={LDS_BYTES}")
        L += ['.amdgcn_target "amdgcn-amd-amdhsa--gfx950"', ".text", f".globl {KNAME}", ".p2align 8", f".type {KNAME},@function", f"{KNAME}:"]
        L += [l if l.endswith(":") else "    " + l for l in body]
        L += ['.section .rodata,"a"', ".p2align 6", f".amdhsa_kernel {KNAME}", "  .amdhsa_next_free_vgpr 512",
              "  .amdhsa_next_free_sgpr 102", "  .amdhsa_accum_offset 256", "  .amdhsa_group_segment_fixed_size 0",
              "  .amdhsa_kernarg_size 96", "  .amdhsa_user_sgpr_count 2", "  .amdhsa_user_sgpr_kernarg_segment_ptr 1",
              "  .amdhsa_system_sgpr_workgroup_id_x 1", ".end_amdhsa_kernel"]
        self.stats = st
        return "\n".join(L) + "\n"


if __name__ == "__main__":
    out = sys.argv[1] if len(sys.argv) > 1 else "k.s"
    g = Gen(stamps="stamps" in sys.argv[2:])
    open(out, "w").write(g.text())
    print(g.stats, "vgpr high", g.V.high, "sgpr high", g.S.high, "stamps", g.nstamp)
```
